```python
import torch

def _softmax(x, axis=-1):
    return torch.softmax(x, dim=axis)
def _gelu(x):
    return torch.nn.functional.gelu(x, approximate="tanh")
def _silu(x):
    return torch.nn.functional.silu(x)
def _sigmoid(x):
    return torch.sigmoid(x)
def _layernorm(x, axis=-1, eps=1e-5):
    m = x.mean(dim=axis, keepdim=True)
    v = x.var(dim=axis, keepdim=True, unbiased=False)
    return (x - m) / torch.sqrt(v + eps)
def _scatter_add(tgt, idx, src, axis=0):
    return tgt.clone().index_add_(axis, idx, src)
def _segment_sum(src, seg, n):
    out = torch.zeros((n,) + src.shape[1:], dtype=src.dtype)
    return out.index_add_(0, seg, src)
def _pad(x, pw):
    flat = tuple(v for pair in reversed(pw) for v in pair)
    return torch.nn.functional.pad(x, flat)

kernel_name = 'concat_heads__spectral_fnet__sliding_local_dilated__prompt'

def setup_inputs():

    _w = (lambda a: (lambda t: t.to(torch.bfloat16) if t.is_floating_point() else t)(torch.as_tensor(a)))
    def _A_setup():
        B, S, D = 1, 2048, 640
        ns = torch.arange(S)[:, None] * torch.arange(S)[None, :]
        nd = torch.arange(D)[:, None] * torch.arange(D)[None, :]
        Ws_re = torch.cos(-2.0 * torch.pi * ns / S).to(float)
        Ws_im = torch.sin(-2.0 * torch.pi * ns / S).to(float)
        Wd_re = torch.cos(-2.0 * torch.pi * nd / D).to(float)
        Wd_im = torch.sin(-2.0 * torch.pi * nd / D).to(float)
        return {
            "x": _w((lambda *s: torch.randn(*s, dtype=torch.bfloat16) * 0.05)(B, S, D)),
            "dft_seq_re": _w(Ws_re),
            "dft_seq_im": _w(Ws_im),
            "dft_hid_re": _w(Wd_re),
            "dft_hid_im": _w(Wd_im),
        }
    _A_in = _A_setup()

    def _B_setup():
        B, S, D = 1, 2048, 640
        return {
            "x": _w((lambda *s: torch.randn(*s, dtype=torch.bfloat16) * 0.2)(B, S, D)),
            "wqkv": _w((lambda *s: torch.randn(*s, dtype=torch.bfloat16) * 0.8)(D, 3 * D)),
            "wo": _w((lambda *s: torch.randn(*s, dtype=torch.bfloat16) * 0.2)(D, D)),
        }
    _B_in = _B_setup()

    return {
        "A_x": _A_in["x"],
        "A_dft_seq_re": _A_in["dft_seq_re"],
        "A_dft_seq_im": _A_in["dft_seq_im"],
        "A_dft_hid_re": _A_in["dft_hid_re"],
        "A_dft_hid_im": _A_in["dft_hid_im"],
        "B_x": _B_in["x"],
        "B_wqkv": _B_in["wqkv"],
        "B_wo": _B_in["wo"],
    }

def reference(A_x, A_dft_seq_re, A_dft_seq_im, A_dft_hid_re, A_dft_hid_im, B_x, B_wqkv, B_wo):
    def _A_ref(x, dft_seq_re, dft_seq_im, dft_hid_re, dft_hid_im):
        a = torch.einsum("bsd,ed->bse", x, dft_hid_re)
        b = torch.einsum("bsd,ed->bse", x, dft_hid_im)
        y = torch.einsum("ts,bse->bte", dft_seq_re, a) - torch.einsum("ts,bse->bte", dft_seq_im, b)
        return y

    def _B_ref(x, wqkv, wo):
        B, S, D = x.shape
        H = 32; Dh = D // H
        W, dil = 8, 2
        qkv = (lambda x, *d: x.permute(*d))((x @ wqkv).reshape(B, S, 3, H, Dh), 2, 0, 3, 1, 4)
        q, k, v = qkv[0], qkv[1], qkv[2]
        scale = Dh ** -0.5
        pos = torch.arange(S)
        off = torch.arange(W) * dil
        idx = pos[:, None] - off[None, :]
        mask = idx >= 0
        idx_c = torch.where(mask, idx, 0).reshape(-1)
        kg = k[:, :, idx_c, :].reshape(B, H, S, W, Dh)
        vg = v[:, :, idx_c, :].reshape(B, H, S, W, Dh)
        logits = torch.einsum("bhsd,bhswd->bhsw", q, kg) * scale
        logits = torch.where(mask[None, None, :, :], logits, -1e9)
        attn = _softmax(logits, axis=-1)
        o = torch.einsum("bhsw,bhswd->bhsd", attn, vg)
        return (lambda x, *d: x.permute(*d))(o, 0, 2, 1, 3).reshape(B, S, D) @ wo

    a = _A_ref(A_x, A_dft_seq_re, A_dft_seq_im, A_dft_hid_re, A_dft_hid_im)
    b = _B_ref(B_x, B_wqkv, B_wo)
    return torch.concatenate([a, b], axis=-1)
```

```python
KN = "concat_heads__spectral_fnet__sliding_local_dilated__prompt"
class Asm:
    def __init__(self):
        self.lines = []
        self.uid = 0
    def __call__(self, s=""):
        for l in s.split("\n"):
            l = l.strip()
            if l: self.lines.append(("" if l.endswith(":") else "    ") + l)
    def label(self, p="L"):
        self.uid += 1
        return f"{p}_{self.uid}"
    def text(self): return "\n".join(self.lines) + "\n"

def kernel_head(name):
    return f""".globl {name}
.p2align 8
.type {name},@function
{name}:
"""
def kernel_desc(name, vgpr, accum, sgpr=102):
    return f""".amdhsa_kernel {name}
  .amdhsa_next_free_vgpr {vgpr}
  .amdhsa_next_free_sgpr {sgpr}
  .amdhsa_accum_offset {accum}
  .amdhsa_group_segment_fixed_size 0
  .amdhsa_kernarg_size 88
  .amdhsa_user_sgpr_count 2
  .amdhsa_user_sgpr_kernarg_segment_ptr 1
  .amdhsa_system_sgpr_workgroup_id_x 1
.end_amdhsa_kernel
"""
def single_file(body, grid, block, lds, vgpr=256, accum=256, sgpr=102, header=""):
    name = KN + "_kernel"
    return (header + f"; @launch grid=({grid},1,1) block=({block},1,1) lds={lds}\n"
            '.amdgcn_target "amdgcn-amd-amdhsa--gfx950"\n.text\n' + kernel_head(name) + body +
            '.section .rodata,"a"\n.p2align 6\n' + kernel_desc(name, vgpr, accum, sgpr))
def multi_file(kernels, header=""):
    s = header
    for (name, body, grid, block, lds, vgpr, accum, sgpr) in kernels:
        s += f"; @launch kernel={name} grid=({grid},1,1) block=({block},1,1) lds={lds}\n"
    s += '.amdgcn_target "amdgcn-amd-amdhsa--gfx950"\n.text\n'
    seen = set()
    for (name, body, *_r) in kernels:
        if name in seen: continue
        seen.add(name); s += kernel_head(name) + body
    s += '.section .rodata,"a"\n'
    seen = set()
    for (name, body, grid, block, lds, vgpr, accum, sgpr) in kernels:
        if name in seen: continue
        seen.add(name); s += ".p2align 6\n" + kernel_desc(name, vgpr, accum, sgpr)
    return s
```

```python
import struct
from gen import *
def fb(x): return struct.unpack("<I", struct.pack("<f", x))[0]
FI = 86016; CLS = 41*256; FX = FI + 2*CLS
EX = 98304
XS = EX + 8*3072
sAX = 44

def gen_mat(a, dst, nks, vidx, scale, T0, T1):
    a(f"""
    v_cvt_f32_u32 v8, v{vidx}
    v_mul_f32 v4, {hex(fb(scale))}, v8
    v_mul_f32 v10, {hex(fb(32*scale))}, v8
    v_fma_f32 v{T0}, v6, v4, v5
    v_cos_f32 v9, v4
    v_add_f32 v{T1}, v{T0}, v10
    v_cos_f32 v10, v10
    v_add_f32 v{T0+1}, v{T0}, v4
    v_add_f32 v{T1+1}, v{T1}, v4
    v_cos_f32 v{T0}, v{T0}
    v_cos_f32 v{T1}, v{T1}
    v_cos_f32 v{T0+1}, v{T0+1}
    v_cos_f32 v{T1+1}, v{T1+1}
    v_add_f32 v9, v9, v9
    v_add_f32 v10, v10, v10
    """)
    for jj in range(2, 8):
        for T in (T0, T1): a(f"v_fma_f32 v{T+jj}, v9, v{T+jj-1}, -v{T+jj-2}")
    for ks in range(nks):
        T, To = (T0, T1) if ks % 2 == 0 else (T1, T0)
        if ks >= 2:
            for k in range(4): a(f"v_pk_fma_f32 v[{T+2*k}:{T+2*k+1}], v[10:11], v[{To+2*k}:{To+2*k+1}], v[{T+2*k}:{T+2*k+1}] op_sel_hi:[0,1,1] neg_lo:[0,0,1] neg_hi:[0,0,1]")
        for k in range(4): a(f"v_cvt_pk_bf16_f32 v{dst+4*ks+k}, v{T+2*k}, v{T+2*k+1}")

def gen_a(g):
    a = g.a
    a(f"""
    s_load_dwordx2 s[{sAX}:{sAX+1}], s[0:1], 0
    s_mov_b32 s{sAX+2}, {2048*1280}
    s_mov_b32 s{sAX+3}, 0x20000
    s_sub_u32 s6, s5, 24               ; j8
    s_lshr_b32 s7, s6, 1
    s_lshl_b32 s7, s7, 3
    s_add_u32 s7, s7, s4               ; b
    s_and_b32 s8, s6, 1                ; side
    s_lshr_b32 s9, s3, 1               ; q
    s_and_b32 s10, s3, 1
    s_lshl_b32 s10, s10, 3
    s_lshl_b32 s11, s7, 4
    s_add_u32 s10, s10, s11
    s_add_u32 s11, s9, 1
    s_and_b32 s11, s11, 2
    s_movk_i32 s12, 1280
    s_cmp_lg_u32 s11, 0
    s_cselect_b32 s12, -1280, s12
    s_movk_i32 s13, 1024
    s_cmp_eq_u32 s9, 1
    s_cselect_b32 s13, 2048, s13
    s_cmp_eq_u32 s9, 0
    s_cselect_b32 s13, 0, s13
    s_mul_i32 s13, s13, 1280
    s_mul_i32 s14, s10, s12
    s_add_u32 s13, s13, s14
    s_add_u32 s15, s12, -1280          ; stride - 1280
    """)
    for t in range(5):
        a(f"""
        v_add_u32 v1, {64*t}, v0
        v_mul_u32_u24 v2, 820, v1
        v_lshrrev_b32 v2, 16, v2           ; n/80
        v_mul_i32_i24 v2, s15, v2
        v_lshl_add_u32 v2, v1, 4, v2
        v_add_u32 v{10+t}, s13, v2
        """)
    a(f"""
    s_lshl_b32 s14, s12, 2
    s_mul_i32 s16, s3, 10240
    s_cmp_eq_u32 s3, 6
    s_cselect_b32 s17, 1, 0
    s_cmp_eq_u32 s7, 0
    s_cselect_b32 s17, s17, 0
    """)
    for t in range(5): a(f"v_add_u32 v{15+t}, s14, v{10+t}")
    a(f"""
    s_cmp_eq_u32 s17, 0
    s_cbranch_scc1 L_a_nz
    v_bfrev_b32 v10, 1
    v_cmp_gt_u32 vcc, 16, v0
    s_nop 1
    v_cndmask_b32 v11, v11, v10, vcc
    L_a_nz:
    s_waitcnt lgkmcnt(0)
    """)
    for t in range(10):
        a(f"s_add_u32 m0, s16, {t*1024}\ns_nop 0\nbuffer_load_dwordx4 v{10+t}, {srd(sAX)}, 0 offen lds")
    a(f"""
    s_lshl_b32 s14, s3, 6
    v_add_u32 v1, s14, v0
    v_lshlrev_b32 v2, 4, v1
    v_add_u32 v2, {512*1280}, v2
    v_cmp_le_u32 vcc, 80, v1
    v_add_u32 v3, {1023*1280}, v2
    s_lshl_b32 s14, s3, 10
    v_cndmask_b32 v2, v2, v3, vcc
    v_cmp_le_u32 vcc, 160, v1
    v_bfrev_b32 v3, 1
    s_add_u32 m0, s14, {64*1280}
    v_cndmask_b32 v2, v2, v3, vcc
    s_cmp_ge_u32 s3, 3
    s_cbranch_scc1 L_a_nx
    buffer_load_dwordx4 v2, {srd(sAX)}, 0 offen lds
    L_a_nx:
    """)
    ntouch = 0
    if g.apre is not None:
        g.a_prefetch(); ntouch = 10 - g.apre
    g.rest_srds()
    a(f"""
    s_cmp_lg_u32 s3, 3
    s_cbranch_scc1 L_a_nt
    v_mul_u32_u24 v1, 0x289000, v0
    v_add_u32 v1, 0xf000, v1
    v_mul_u32_u24 v2, {820*2560}, v0
    v_add_u32 v2, 1280, v2
    buffer_load_dword v255, v1, {srd(sWS)}, 0 offen
    buffer_load_dword v255, v2, {srd(sOUT)}, 0 offen
    L_a_nt:
    """)
    a(f"""
    s_mul_i32 s10, s3, 40
    v_and_b32 v1, 15, v0
    v_lshrrev_b32 v2, 4, v0            ; g
    v_lshlrev_b32 v3, 3, v2
    v_cvt_f32_u32 v6, v3               ; 8g
    s_cmp_eq_u32 s8, 0
    s_cselect_b32 s11, 0, {hex(fb(-0.25))}
    s_cselect_b32 s18, 1.0, -1.0       ; sigma
    v_mov_b32 v5, s11
    v_and_b32 v3, 1, v0
    v_mul_u32_u24 v7, 0x8000, v3
    v_lshl_or_b32 v7, v7, 16, v7
    v_add_u32 v3, s10, v1
    """)
    for nt in range(3):
        if nt: a("v_add_u32 v3, 16, v3")
        gen_mat(a, 64 + 40*nt, 5, 3, 1/640, 32, 40)
        for k in range(20): a(f"v_xor_b32 v{64+40*nt+20+k}, v7, v{64+40*nt+k}")
    a(f"""
    v_subrev_u32 v3, s8, v0
    v_and_b32 v4, 2, v3
    v_lshlrev_b32 v4, 14, v4
    v_or_b32 v4, 0x3f80, v4
    v_and_b32 v3, 1, v3
    v_and_or_b32 v3, v0, 48, v3
    v_cmp_eq_u32 vcc, 0, v3
    v_mov_b32 v185, 0
    v_mov_b32 v186, 0
    v_mov_b32 v187, 0
    v_cndmask_b32 v184, 0, v4, vcc
    """)
    g.stamp(1)
    def unit_addr():
        a(f"""
        s_cmp_ge_u32 s12, 5
        s_cselect_b32 s13, 8, 0
        s_cselect_b32 s14, 5, 0
        s_sub_u32 s14, s12, s14
        s_lshl_b32 s14, s14, 3
        v_lshrrev_b32 v8, 3, v0
        v_add_u32 v8, s13, v8              ; i
        v_and_b32 v9, 7, v0
        v_add_u32 v9, s14, v9              ; j
        """)
    def item_addr():
        a(f"""
        v_mul_u32_u24 v10, 1280, v8
        v_and_b32 v11, 7, v9
        v_xor_b32 v11, v11, v8
        v_lshlrev_b32 v11, 4, v11
        v_lshl_add_u32 v11, v9, 8, v11
        v_add_u32 v230, {FI}, v11
        v_add_u32 v231, {FI+CLS}, v11
        v_subrev_u32 v11, 20, v9
        v_cmp_gt_u32 vcc, 20, v11
        v_min_u32 v12, v9, v11             ; j or c (J = 40 -> 20)
        v_lshlrev_b32 v12, 4, v12
        v_cndmask_b32 v11, 0, v232, vcc
        v_add3_u32 v224, v10, v12, v11
        v_sub_u32 v13, v10, v12
        v_sub_u32 v13, v13, v11
        v_add_u32 v225, {79*16}, v13
        v_cmp_eq_u32 vcc, 0, v12
        v_mov_b32 v229, s18
        v_mov_b32 v237, s18
        v_cndmask_b32 v228, -1, 0, vcc
        """)
    def fold(rows):
        for q in range(4):
            f, m = rows[q]
            a(f"ds_read_b128 v[{32+8*q}:{35+8*q}], v{f}\nds_read_b128 v[{36+8*q}:{39+8*q}], v{m}\nds_read_b32 v{240+q}, v{m} offset:16")
        a("v_mov_b32 v238, 0xffff0000\ns_waitcnt lgkmcnt(0)")
        for q in range(4): a(f"v_and_b32 v{240+q}, v228, v{240+q}")
        pk = "op_sel_hi:[1,0,1]"
        for k in range(4):
            for q in range(4):
                F = 32 + 8*q + k; M = 36 + 8*q
                lo = 240 + q if k == 0 else M + 4 - k
                a(f"v_lshlrev_b32 v{8+4*q}, 16, v{F}\nv_and_b32 v{9+4*q}, v238, v{F}\nv_lshlrev_b32 v{10+4*q}, 16, v{lo}\nv_and_b32 v{11+4*q}, v238, v{M+3-k}")
            a(f"""
            v_pk_add_f32 v[8:9], v[8:9], v[14:15]
            v_pk_add_f32 v[10:11], v[10:11], v[12:13]
            v_pk_add_f32 v[16:17], v[16:17], v[22:23]
            v_pk_add_f32 v[18:19], v[18:19], v[20:21]
            v_pk_fma_f32 v[8:9], v[10:11], v[236:237], v[8:9] op_sel:[0,1,0]
            v_pk_fma_f32 v[16:17], v[18:19], v[236:237], v[16:17] op_sel:[0,1,0]
            v_pk_fma_f32 v[10:11], v[16:17], v[228:229], v[8:9] op_sel:[0,1,0]
            v_pk_fma_f32 v[12:13], v[16:17], v[228:229], v[8:9] op_sel:[0,1,0] neg_lo:[1,0,0] neg_hi:[1,0,0]
            v_cvt_pk_bf16_f32 v{24+k}, v10, v11
            v_cvt_pk_bf16_f32 v{28+k}, v12, v13
            """)
        a("ds_write_b128 v230, v[24:27]\nds_write_b128 v231, v[28:31]")
    a("s_mov_b32 s12, s3\nv_mov_b32 v232, 640")
    unit_addr(); item_addr()
    a(f"""
    s_cmp_ge_u32 s3, 4
    s_cbranch_scc1 L_a_w4
    s_waitcnt vmcnt(2)
    s_branch L_a_w5
    L_a_w4:
    s_waitcnt vmcnt({ntouch})
    L_a_w5:
    """.replace("s_waitcnt vmcnt(2)", "s_waitcnt vmcnt(0)"))
    a("s_barrier")
    g.stamp(2)
    a("L_a_f1:\nv_add_u32 v233, 20480, v224\nv_add_u32 v234, 20480, v225\nv_add_u32 v226, 40960, v224\nv_add_u32 v227, 40960, v225\nv_add_u32 v235, 61440, v224\nv_add_u32 v239, 61440, v225\nL_a_f2:")
    fold([(224, 225), (233, 234), (226, 227), (235, 239)])
    a(f"""
    s_cmp_ge_u32 s3, 3
    s_cbranch_scc1 L_a_fdone
    s_cmp_lg_u32 s17, 2
    s_cbranch_scc0 L_a_fdone
    s_mov_b32 s17, 2
    s_add_u32 s12, s3, 8
    s_cmp_eq_u32 s3, 2
    s_cbranch_scc1 L_a_u10
    """)
    unit_addr(); item_addr()
    a(f"""
    s_branch L_a_f1
    L_a_u10:
    v_subrev_u32 v8, 48, v0
    v_max_i32 v8, 0, v8
    v_min_u32 v9, 40, v0
    """)
    item_addr()
    a(f"""
    v_add_u32 v233, 20480, v224
    v_add_u32 v234, 20480, v225
    v_add_u32 v226, 40960, v224
    v_add_u32 v227, 40960, v225
    v_add_u32 v235, 61440, v224
    v_add_u32 v239, 61440, v225
    v_cmp_gt_u32 vcc, 48, v0
    v_add_u32 v10, {64*1280}, v224
    v_add_u32 v11, {64*1280}, v225
    v_add_u32 v12, {65*1280}, v224
    v_add_u32 v13, {65*1280}, v225
    v_lshlrev_b32 v14, 4, v9
    v_add_u32 v14, {FX}, v14
    v_cndmask_b32 v224, v224, v10, vcc
    v_cndmask_b32 v225, v225, v11, vcc
    v_cndmask_b32 v233, v233, v12, vcc
    v_cndmask_b32 v234, v234, v13, vcc
    v_cndmask_b32 v230, v230, v14, vcc
    v_cndmask_b32 v231, v231, v14, vcc
    v_cndmask_b32 v229, v229, 0, vcc
    s_branch L_a_f2
    L_a_fdone:
    """)
    a(f"""
    v_and_b32 v1, 15, v0
    v_lshrrev_b32 v2, 4, v0
    v_xor_b32 v3, v1, v2
    v_lshlrev_b32 v3, 4, v3
    v_lshl_add_u32 v3, v2, 8, v3
    v_add_u32 v8, {FI}, v3
    v_xor_b32 v9, 64, v8
    v_lshlrev_b32 v10, 4, v1
    v_add_u32 v10, {FI + 40*256}, v10
    v_mov_b32 v245, 252
    s_cmp_lg_u32 s3, 7
    s_cbranch_scc1 L_a_n7
    buffer_load_dword v244, v245, {srd(sDBG)}, 0 offen sc1
    L_a_n7:
    s_lshl_b32 s11, s8, 1
    v_and_b32 v3, 1, v2
    v_add_u32 v3, s11, v3
    v_lshl_add_u32 v3, v3, 3, s3
    v_mul_u32_u24 v3, 49152, v3
    v_lshrrev_b32 v4, 1, v2
    s_lshl_b32 s11, s7, 1
    v_add_u32 v4, s11, v4
    v_mul_u32_u24 v4, 48, v4
    v_add_u32 v4, v4, v1
    v_lshl_add_u32 v3, v4, 4, v3
    v_add_u32 v11, {WS_U}, v3
    s_waitcnt lgkmcnt(0)
    s_barrier
    """)
    g.stamp(3)
    def rd(ks):
        F = 32 + 8*(ks & 1)
        v, o = ((8 + (ks & 1)), ks*1024) if ks < 10 else (10, 0)
        return [f"ds_read_b128 v[{F+4*c}:{F+4*c+3}], v{v} offset:{o + c*CLS}" for c in range(2)]
    for r in rd(0): a(r)
    for ks in range(11):
        F = 32 + 8*(ks & 1)
        a("s_waitcnt lgkmcnt(0)")
        r = rd(ks+1) if ks < 10 else []
        i = 0
        for c in range(2):
            for nt in range(3):
                d = 192 + 12*c + 4*nt
                B = 64 + 40*nt + 4*ks if ks < 10 else 184
                if i < len(r): a(r[i])
                a(f"v_mfma_f32_16x16x32_bf16 v[{d}:{d+3}], v[{F+4*c}:{F+4*c+3}], v[{B}:{B+3}], {'0' if ks == 0 else f'v[{d}:{d+3}]'}")
                i += 1
    g.stamp(4)
    a(f"""
    s_nop 6
    """)
    for nt in range(3):
        d0, d1, o = 192 + 4*nt, 204 + 4*nt, 12 + 4*nt
        a(f"""
        v_cvt_pk_bf16_f32 v{o}, v{d0}, v{d0+1}
        v_cvt_pk_bf16_f32 v{o+1}, v{d0+2}, v{d0+3}
        v_cvt_pk_bf16_f32 v{o+2}, v{d1}, v{d1+1}
        v_cvt_pk_bf16_f32 v{o+3}, v{d1+2}, v{d1+3}
        s_nop 1
        v_permlane16_swap_b32 v{o}, v{o+2}
        v_permlane16_swap_b32 v{o+1}, v{o+3}
        buffer_store_dwordx4 v[{o}:{o+3}], v11, {srd(sWS)}, 0 offen offset:{nt*256} sc1
        """)
    a(f"""
    ; extra row (s' = 512): workgroup b < 24, wave b/3, tile b%3
    s_mul_i32 s11, s7, 86
    s_lshr_b32 s11, s11, 8
    s_cmp_lg_u32 s11, s3
    s_cbranch_scc1 L_a_pub
    s_mul_i32 s11, s11, 3
    s_sub_u32 s11, s7, s11
    v_lshlrev_b32 v8, 4, v2
    v_add_u32 v8, {FX}, v8
    v_mov_b32 v9, {FX + 640}
    """)
    for ks in range(11): a(f"ds_read_b128 v[{20+4*ks}:{23+4*ks}], v{8 if ks < 10 else 9} offset:{ks*64 if ks < 10 else 0}")
    a(f"""
    s_mul_i32 s12, s8, 384
    s_mul_i32 s13, s3, 48
    s_add_u32 s12, s12, s13
    s_lshl_b32 s13, s11, 4
    s_add_u32 s12, s12, s13
    s_lshl_b32 s12, s12, 2
    s_add_u32 s12, s12, {WS_V}
    v_lshl_add_u32 v3, v0, 2, s12
    s_waitcnt lgkmcnt(0)
    s_cmp_eq_u32 s11, 1
    s_cbranch_scc1 L_a_v1
    s_cmp_eq_u32 s11, 2
    s_cbranch_scc1 L_a_v2
    """)
    for nt in range(3):
        if nt: a(f"L_a_v{nt}:")
        for ks in range(11):
            B = 64 + 40*nt + 4*ks if ks < 10 else 184
            a(f"v_mfma_f32_16x16x32_bf16 v[216:219], v[{20+4*ks}:{23+4*ks}], v[{B}:{B+3}], {'0' if ks == 0 else 'v[216:219]'}")
        if nt < 2: a("s_branch L_a_v3")
    a(f"""
    L_a_v3:
    s_mov_b64 exec, 0xffff
    s_nop 7
    buffer_store_dword v216, v3, {srd(sWS)}, 0 offen sc1
    s_mov_b64 exec, -1
    L_a_pub:
    s_lshl_b32 s9, s4, 1
    s_lshr_b32 s10, s6, 2
    s_add_u32 s9, s9, s10              ; group
    s_lshr_b32 s12, s9, 3              ; class c
    s_and_b32 s13, s9, 7               ; jn
    s_and_b32 s14, s6, 3               ; m
    s_lshr_b32 s15, s3, 2
    s_and_b32 s16, s3, 3               ; mp
    s_waitcnt vmcnt(0)
    """)
    g.stamp(5)
    a(f"""
    s_barrier
    s_cmp_lg_u32 s3, 7
    s_cbranch_scc1 L_a_noflag
    v_readfirstlane_b32 s56, v244
    s_mov_b32 s57, 0
    L_a_ep:
    s_cmp_lg_u32 s56, 0
    s_cbranch_scc1 L_a_gotep
    buffer_load_dword v244, v245, {srd(sDBG)}, 0 offen sc1
    s_add_u32 s57, s57, 1
    s_waitcnt vmcnt(0)
    v_readfirstlane_b32 s56, v244
    s_cmp_lt_u32 s57, {SPIN}
    s_cbranch_scc1 L_a_ep
    L_a_gotep:
    s_lshl_b32 s10, s7, 1
    s_add_u32 s10, s10, s8
    s_lshl_b32 s10, s10, 7
    s_add_u32 s10, s10, {WS_FLAGA}
    v_mov_b32 v1, s10
    v_mov_b32 v2, s56
    s_mov_b64 exec, 1
    buffer_store_dword v2, v1, {srd(sWS)}, 0 offen sc1
    s_mov_b64 exec, -1
    L_a_noflag:
    """)
    a(f"""
    v_and_b32 v1, 15, v0
    v_lshrrev_b32 v2, 4, v0
    v_lshlrev_b32 v3, 3, v2
    s_cmp_eq_u32 s15, 0
    s_cselect_b32 s11, 0, {hex(fb(-0.25))}
    v_mov_b32 v5, s11
    s_lshl_b32 s10, s14, 2
    s_add_u32 s10, s10, s16
    s_lshl_b32 s10, s10, 6
    s_add_u32 s10, s10, s12
    v_lshl_add_u32 v30, v1, 1, s10     ; t (tile 0)
    """)
    a("v_cvt_f32_u32 v6, v3\nv_add_u32 v31, 32, v30")
    for tt in range(2): gen_mat(a, 64 + 64*tt, 16, 30 + tt, 1/2048, 32, 40)
    g.stamp(6)
    a(f"""
    v_mov_b32 v228, 0xbf803f80
    v_mov_b32 v229, 0xbf803f80
    v_mov_b32 v230, 0xbf803f80
    v_mov_b32 v231, 0xbf803f80
    s_lshl_b32 s10, s15, 1
    s_add_u32 s10, s10, s12
    s_lshl_b32 s10, s10, 3
    s_add_u32 s10, s10, s13
    s_mul_i32 s10, s10, 49152
    s_mul_i32 s11, s16, 3072
    s_add_u32 s10, s10, s11
    s_add_u32 s10, s10, {WS_U}
    v_lshl_add_u32 v8, v0, 4, s10
    s_mul_i32 s17, s15, 49152
    s_add_u32 s18, s17, s11
    v_mul_u32_u24 v9, 768, v2
    v_lshl_add_u32 v9, v1, 4, v9
    v_add_u32 v9, s17, v9
    ; V address
    s_mul_i32 s10, s15, 384
    s_mul_i32 s11, s13, 48
    s_add_u32 s10, s10, s11
    s_lshl_b32 s10, s10, 2
    s_add_u32 s10, s10, {WS_V}
    v_lshl_add_u32 v10, v2, 4, s10
    v_and_b32 v3, 1, v0
    v_lshlrev_b32 v3, 31, v3
    v_or_b32 v3, 1.0, v3
    s_cmp_eq_u32 s15, s12
    s_cselect_b64 vcc, -1, 0
    v_cndmask_b32 v11, 0, v3, vcc
    s_or_b32 s10, s12, s14
    s_or_b32 s10, s10, s15
    s_cmp_eq_u32 s10, 0
    s_cselect_b32 s19, s16, 4
    s_mul_i32 s10, s3, 3072
    s_add_u32 s10, s10, {EX}
    v_lshl_add_u32 v12, v0, 4, s10
    s_xor_b32 s10, s3, 4
    s_mul_i32 s10, s10, 3072
    s_add_u32 s10, s10, {EX}
    v_lshl_add_u32 v13, v0, 4, s10
    s_lshl_b32 s10, s15, 5
    v_add_u32 v3, s10, v30             ; t
    v_sub_u32 v4, 2048, v3
    v_and_b32 v6, 1, v2
    v_cmp_eq_u32 vcc, 0, v6
    v_lshrrev_b32 v6, 1, v2
    v_lshlrev_b32 v6, 4, v6            ; 16 B * (g>>1)
    v_cndmask_b32 v14, v4, v3, vcc
    v_cndmask_b32 v15, v3, v4, vcc
    s_mul_i32 s10, s13, 80
    v_mul_u32_u24 v14, 2560, v14
    v_mul_u32_u24 v15, 2560, v15
    v_add3_u32 v14, v14, v6, s10
    v_sub_u32 v15, v15, v6
    s_sub_u32 s10, {1264 - 64}, s10
    v_add_u32 v15, s10, v15            ; + 64 - 32*nt
    v_cmp_gt_u32 vcc, 32, v0
    v_mov_b32 v18, 0xffff
    v_mov_b32 v19, 0xffff
    v_cndmask_b32 v16, 0, v18, vcc
    v_xor_b32 v17, v16, v18
    s_cmp_lg_u32 s3, 7
    s_cbranch_scc1 L_a_nopoll
    v_lshlrev_b32 v3, 7, v0
    v_add_u32 v3, {WS_FLAGA}, v3
    L_a_poll:
    buffer_load_dword v4, v3, {srd(sWS)}, 0 offen sc1
    s_add_u32 s57, s57, 1
    s_cmp_ge_u32 s57, {SPIN}
    s_cbranch_scc1 L_a_nopoll
    s_waitcnt vmcnt(0)
    v_cmp_ne_u32 vcc, s56, v4
    s_cbranch_vccnz L_a_poll
    L_a_nopoll:
    """)
    g.stamp(7)
    a("s_barrier")
    for G in range(4):
        a(f"s_movk_i32 s10, {G*12288}" if G < 2 else f"s_mov_b32 s10, {G*12288}")
        for k in range(3):
            a(f"s_add_u32 m0, s18, {G*12288}\ns_nop 0\nbuffer_load_dwordx4 v8, {srd(sWS)}, s10 offen offset:{k*1024} sc1 lds")
    for nt in range(3): a(f"buffer_load_dwordx4 v[{232+4*nt}:{235+4*nt}], v10, {srd(sWS)}, 0 offen offset:{nt*64} sc1")
    def rd2(ks):
        F = 32 + 12*(ks & 1)
        return [f"ds_read_b128 v[{F+4*nt}:{F+4*nt+3}], v9 offset:{ks*3072 + nt*256}" for nt in range(3)]
    a("s_waitcnt vmcnt(12)")
    g.stamp(8)
    a("s_barrier")
    for r in rd2(0): a(r)
    for ks in range(16):
        F = 32 + 12*(ks & 1)
        a("s_waitcnt lgkmcnt(0)")
        if ks % 4 == 3 and ks < 15: a(f"s_waitcnt vmcnt({12 - 3*(ks+1)//4})\ns_barrier")
        r = rd2(ks+1) if ks < 15 else []
        i = 0
        for tt in range(2):
            for nt in range(3):
                d = 192 + 12*tt + 4*nt; B = 64 + 64*tt + 4*ks
                if i < len(r): a(r[i])
                a(f"v_mfma_f32_16x16x32_bf16 v[{d}:{d+3}], v[{F+4*nt}:{F+4*nt+3}], v[{B}:{B+3}], {'0' if ks == 0 else f'v[{d}:{d+3}]'}")
                i += 1
        l = a.label("L_a_x")
        a(f"s_cmp_lg_u32 s19, {ks//4}\ns_cbranch_scc1 {l}")
        for nt in range(3):
            d = 216 + 4*nt
            a(f"v_mfma_f32_16x16x32_bf16 v[{d}:{d+3}], v[{F+4*nt}:{F+4*nt+3}], v[228:231], {'0' if ks % 4 == 0 else f'v[{d}:{d+3}]'}")
        a(f"{l}:")
    g.stamp(9)
    a("s_waitcnt vmcnt(0)\ns_nop 6")
    for tt in range(2):
        for nt in range(3):
            for r in range(4):
                d = 192 + 12*tt + 4*nt + r
                a(f"v_fma_f32 v{d}, v{232+4*nt+r}, v11, v{d}")
    a("s_cmp_eq_u32 s15, 0\ns_cbranch_scc1 L_a_sp")
    for nt in range(3): a(f"ds_write_b128 v12, v[{192+4*nt}:{195+4*nt}] offset:{nt*1024}")
    a("s_branch L_a_sq\nL_a_sp:")
    for nt in range(3): a(f"ds_write_b128 v12, v[{204+4*nt}:{207+4*nt}] offset:{nt*1024}")
    a(f"""
    s_cmp_eq_u32 s19, 4
    s_cbranch_scc1 L_a_sq
    s_mul_i32 s10, s16, 192
    s_add_u32 s10, s10, {XS}
    v_lshl_add_u32 v3, v2, 4, s10
    """)
    for nt in range(3): a(f"ds_write_b128 v3, v[{216+4*nt}:{219+4*nt}] offset:{nt*64}")
    a("L_a_sq:\ns_waitcnt lgkmcnt(0)\ns_barrier")
    for nt in range(3): a(f"ds_read_b128 v[{32+4*nt}:{35+4*nt}], v13 offset:{nt*1024}")
    a("s_cmp_eq_u32 s15, 0\ns_cbranch_scc1 L_a_cp\ns_waitcnt lgkmcnt(0)")
    for k in range(12): a(f"v_sub_f32 v{64+k}, v{32+k}, v{204+k}\nv_add_f32 v{76+k}, v{32+k}, v{204+k}")
    a("s_branch L_a_cq\nL_a_cp:\ns_waitcnt lgkmcnt(0)")
    for k in range(12): a(f"v_sub_f32 v{64+k}, v{192+k}, v{32+k}\nv_add_f32 v{76+k}, v{192+k}, v{32+k}")
    a("L_a_cq:")
    for nt in range(3):
        o = 88 + 8*nt; f = 64 + 4*nt; h = 76 + 4*nt
        a(f"""
        v_cvt_pk_bf16_f32 v{o}, v{f}, v{f+1}
        v_cvt_pk_bf16_f32 v{o+1}, v{f+2}, v{f+3}
        v_cvt_pk_bf16_f32 v{o+2}, v{h}, v{h+1}
        v_cvt_pk_bf16_f32 v{o+3}, v{h+2}, v{h+3}
        s_nop 1
        v_permlane16_swap_b32 v{o}, v{o+2}
        v_permlane16_swap_b32 v{o+1}, v{o+3}
        """)
        if nt < 2: a(f"buffer_store_dwordx4 v[{o}:{o+3}], v14, {srd(sOUT)}, 0 offen offset:{nt*32} {g.outflag}")
    for nt in range(3):
        o = 88 + 8*nt; on = o + 8 if nt < 2 else o
        a(f"""
        v_mov_b32 v20, v{o}
        v_mov_b32 v21, v{on}
        v_bfi_b32 v{o+5}, v19, v{o+3}, v{o+2}
        v_bfi_b32 v{o+6}, v19, v{o+2}, v{o+1}
        v_permlane32_swap_b32 v20, v21
        v_bfi_b32 v{o+7}, v19, v{o+1}, v{o}
        v_bfi_b32 v{o+4}, v17, v20, v{o+3}
        v_bfi_b32 v{o+4}, v16, v21, v{o+4}
        """)
        if nt == 2: a(f"s_mov_b64 exec, 0xffffffff\nbuffer_store_dwordx4 v[{o}:{o+3}], v14, {srd(sOUT)}, 0 offen offset:64 {g.outflag}")
        a(f"buffer_store_dwordx4 v[{o+4}:{o+7}], v15, {srd(sOUT)}, 0 offen offset:{64 - 32*nt} {g.outflag}")
    a("s_mov_b64 exec, -1")
    a(f"""
    s_cmp_lg_u32 s19, 0
    s_cbranch_scc1 L_a_done
    v_min_u32 v3, 47, v0
    v_lshlrev_b32 v4, 2, v3
    v_add_u32 v5, {XS}, v4
    ds_read_b32 v16, v5
    ds_read_b32 v17, v5 offset:192
    ds_read_b32 v18, v5 offset:384
    ds_read_b32 v19, v5 offset:576
    s_mul_i32 s10, s13, 192
    s_add_u32 s10, s10, {WS_V}
    v_add_u32 v4, s10, v4
    buffer_load_dword v20, v4, {srd(sWS)}, 0 offen sc1
    s_mul_i32 s10, s13, 40
    v_add_u32 v3, s10, v3              ; e
    v_lshlrev_b32 v6, 1, v3
    v_sub_u32 v7, {1024*2560 + 1280}, v6
    v_add_u32 v6, {1024*2560}, v6
    v_cmp_eq_u32 vcc, 0, v3
    s_waitcnt vmcnt(0) lgkmcnt(0)
    v_cndmask_b32 v7, v7, v6, vcc
    v_add_f32 v16, v16, v17
    v_add_f32 v18, v18, v19
    v_add_f32 v16, v16, v20
    v_add_f32 v16, v16, v18
    v_cvt_pk_bf16_f32 v16, v16, v16
    buffer_store_short v16, v6, {srd(sOUT)}, 0 offen {g.outflag}
    buffer_store_short v16, v7, {srd(sOUT)}, 0 offen {g.outflag}
    L_a_done:
    """)
    if g.stamps: a("s_waitcnt vmcnt(0)")
    g.stamp(10)
    a("L_a_fin:")
    g.stamp_out(11)
```

```python
import sys
from asmlib import *

WS_X     = 0x0
WS_FLAGB = 0x1000
WS_FLAGA = 0x8000
WS_V     = 0xC000
WS_STAMP = 0x500000
WS_O     = 0x10000
WS_U     = 0x2A0000
WS_SIZE  = 0x600000
O_BYTES  = 80 * 32768

import os
NH = int(os.environ.get("NH", "2"))
XMAP = int(os.environ.get("XMAP", "0"))
if NH == 4:
    SLOT, WOFF, QS, BLK = 45056, 12288, 520, 86
else:
    SLOT, WOFF, QS, BLK = 40960, 24576, 264, 171
NX, NW_ = (3, 8) if NH == 4 else (6, 4)
WROW = 512 if NH == 4 else 256
NG = 32 // NH
NB = 192 // (2 * NG)
XREG = 81920
LDS_BYTES = 163840
SPIN = 0x40000

sX, sW, sWO, sOUT, sWS, sDBG = 20, 24, 28, 32, 36, 40
def srd(n): return f"s[{n}:{n+3}]"

class G:
    def __init__(self, stamps=False, doA=True):
        self.a = Asm(); self.stamps = stamps; self.doA = doA
    def stamp(self, idx, force=False):
        if self.stamps and (force or not self.diag or idx == 0): self.a(f"s_memtime s[{64+2*idx}:{65+2*idx}]")
    def stamp_out(self, n):
        if not self.stamps: return
        a = self.a
        a("s_memrealtime s[94:95]\ns_waitcnt lgkmcnt(0)")
        a("s_lshl_b32 s4, s2, 3\ns_add_u32 s4, s4, s3\ns_lshl_b32 s4, s4, 6")
        a(f"s_add_u32 s4, s4, {WS_STAMP}\nv_mov_b32 v1, s4\ns_mov_b64 exec, 1")
        for j in range(0, 16, 4):
            for i in range(4):
                k = j + i
                if k == 0: a(f"v_mov_b32 v{4+i}, s96")
                elif k == 15: a(f"v_mov_b32 v{4+i}, s94")
                elif k < n: a(f"s_sub_u32 s5, s{64+2*k}, s64\nv_mov_b32 v{4+i}, s5")
                else: a(f"v_mov_b32 v{4+i}, 0")
            a(f"buffer_store_dwordx4 v[4:7], v1, {srd(sWS)}, 0 offen offset:{j*4}\ns_nop 1")

    def prologue(self):
        a = self.a
        a(f"""
        L_start:
        s_cmp_ge_u32 s2, 256
        s_cbranch_scc1 L_end
        s_load_dwordx2 s[{sX}:{sX+1}], s[0:1], 40
        s_load_dwordx2 s[{sW}:{sW+1}], s[0:1], 48
        s_load_dwordx2 s[{sWO}:{sWO+1}], s[0:1], 56
        s_load_dwordx2 s[{sOUT}:{sOUT+1}], s[0:1], 64
        s_load_dwordx2 s[{sDBG}:{sDBG+1}], s[0:1], 72
        s_load_dwordx2 s[{sWS}:{sWS+1}], s[0:1], 80
        """)
        if self.stamps: a("s_memrealtime s[96:97]")
        self.stamp(0)
        a(f"""
        v_lshrrev_b32 v1, 6, v0
        v_and_b32 v0, 63, v0
        v_readfirstlane_b32 s3, v1
        s_mov_b32 s{sX+2}, {2048*1280}
        s_mov_b32 s{sX+3}, 0x20000
        s_mov_b32 s{sW+2}, {640*3840}
        s_mov_b32 s{sW+3}, 0x20000
        s_and_b32 s4, s2, 7
        s_lshr_b32 s5, s2, 3             ; slot
        s_cmp_ge_u32 s5, 24
        s_cbranch_scc1 L_A
        s_and_b32 s6, s4, 1              ; parity
        """)
        if NH == 4: a("""
        s_lshr_b32 s7, s5, 1             ; blk 0..11
        s_and_b32 s8, s4, 6
        s_and_b32 s9, s5, 1
        s_add_u32 s8, s8, s9
        """)
        elif XMAP == 0: a("""
        s_lshr_b32 s7, s5, 2             ; blk 0..5
        s_and_b32 s8, s4, 6
        s_lshl_b32 s8, s8, 1
        s_and_b32 s9, s5, 3
        s_add_u32 s8, s8, s9
        """)
        else: a("""
        s_lshr_b32 s7, s5, 3
        s_bfe_u32 s9, s4, 0x10001
        s_mul_i32 s9, s9, 3
        s_add_u32 s7, s7, s9             ; blk 0..5
        s_and_b32 s8, s4, 4
        s_lshl_b32 s8, s8, 1
        s_and_b32 s9, s5, 7
        s_add_u32 s8, s8, s9
        """)
        a(f"""
        s_mul_i32 s9, s7, {BLK}
        s_sub_u32 s9, s9, 8
        s_cmp_lt_u32 s3, 4
        s_cbranch_scc1 L_Bcomp
        """)
    def rest_srds(self):
        self.a(f"""
        s_mov_b32 s{sWO+2}, {640*1280}
        s_mov_b32 s{sWO+3}, 0x20000
        s_mov_b32 s{sOUT+2}, {2048*2560}
        s_mov_b32 s{sOUT+3}, 0x20000
        s_mov_b32 s{sWS+2}, {WS_SIZE}
        s_mov_b32 s{sWS+3}, 0x20000
        s_mov_b32 s{sDBG+2}, 256
        s_mov_b32 s{sDBG+3}, 0x20000
        """)
    def b2_params(self):
        self.a(f"""
        s_mul_i32 s44, s5, 52
        s_lshr_b32 s44, s44, 8           ; slot/5
        s_mul_i32 s46, s44, 5
        s_sub_u32 s46, s5, s46           ; cb
        s_lshl_b32 s45, s4, 2
        s_add_u32 s45, s45, s44
        s_and_b32 s44, s45, 1
        s_lshr_b32 s45, s45, 1
        """)


    def hoist(self):
        self.a(f"""
        v_and_b32 v1, 31, v0               ; tok
        v_lshrrev_b32 v2, 5, v0            ; hh
        s_lshr_b32 s12, s3, {NH//4}
        s_lshl_b32 s12, s12, 5
        s_and_b32 s16, s3, {NH//4}
        v_add_u32 v3, s12, v1              ; r-8
        v_mul_u32_u24 v4, {QS}, v3
        v_mul_u32_u24 v5, 40, v2
        s_mul_i32 s11, s16, 80
        v_add_u32 v5, s11, v5
        v_add_u32 v224, v4, v5
        v_and_b32 v232, 3, v0              ; j
        v_bfe_u32 v7, v0, 2, 2
        v_lshl_add_u32 v7, v232, 2, v7
        v_and_b32 v8, 16, v0
        v_add3_u32 v7, v7, v8, s12
        v_mul_u32_u24 v7, {QS}, v7
        v_add_u32 v225, v7, v5
        v_cmp_le_u32 s[48:49], 1, v232     ; i<=j for i=1
        v_cmp_le_u32 s[50:51], 2, v232
        v_cmp_le_u32 s[52:53], 3, v232
        v_mov_b32 v9, 0xffff
        v_cndmask_b32 v226, v9, -1, s[48:49]
        v_cndmask_b32 v227, 0, v9, s[50:51]
        v_cndmask_b32 v227, v227, -1, s[52:53]    ; keys 2,3
        v_add_u32 v228, s9, v3
        v_add_u32 v228, 8, v228
        s_lshl_b32 s11, s8, {NH//4}
        s_add_u32 s11, s11, s16
        s_mul_i32 s11, s11, {5*32768}
        s_lshl_b32 s14, s6, 14
        s_add_u32 s11, s11, s14
        s_add_u32 s11, s11, {WS_O}
        v_lshlrev_b32 v6, 4, v228
        v_add_u32 v6, s11, v6
        v_lshl_add_u32 v7, v2, 3, v6
        v_add_u32 v7, {4*32768}, v7
        v_lshl_add_u32 v6, v2, 16, v6
        s_sub_u32 s14, 1016, s9
        s_min_u32 s14, s14, {BLK}
        v_cmp_gt_u32 vcc, s14, v3
        v_bfrev_b32 v8, 1
        s_and_b32 s15, s3, 3               ; cp
        v_cndmask_b32 v229, v8, v6, vcc
        v_cndmask_b32 v231, v8, v7, vcc
        v_add_u32 v230, 32768, v229
        s_lshr_b32 s16, s3, 2              ; tr
        v_lshrrev_b32 v2, 4, v0            ; g
        v_bfe_u32 v5, v0, 2, 2             ; r
        v_and_b32 v7, 1, v2
        v_lshl_or_b32 v7, v7, 2, v5
        s_lshl_b32 s12, s15, 1
        v_xor_b32 v7, s12, v7
        v_lshl_add_u32 v8, v2, 3, v5
        v_lshlrev_b32 v8, 8, v8
        v_lshl_add_u32 v8, v232, 3, v8
        v_lshl_add_u32 v233, v7, 5, v8
        v_xor_b32 v234, 32, v233           ; ct1
        v_add_u32 v235, {XREG}, v233
        v_add_u32 v236, {XREG}, v234
        v_add_u32 v237, {XREG+8*8192}, v233
        v_add_u32 v238, {XREG+8*8192}, v234
        v_add_u32 v239, {8*8192}, v233
        v_add_u32 v240, {8*8192}, v234
        s_lshl_b32 s12, s44, 14
        s_lshl_b32 s11, s45, 10
        s_add_u32 s12, s12, s11
        s_lshl_b32 s11, s3, 15
        s_add_u32 s12, s12, s11
        s_add_u32 s12, s12, {WS_O}
        v_lshl_add_u32 v241, v0, 4, s12
        s_lshl_b32 s60, s3, 10
        s_add_u32 s60, s60, {XREG}
        v_and_b32 v1, 15, v0
        v_lshlrev_b32 v3, 10, v2
        v_lshl_add_u32 v3, v1, 4, v3
        s_lshl_b32 s14, s16, 9
        s_add_u32 s14, s14, {XREG}
        v_add_u32 v242, s14, v3
        v_add_u32 v243, {12*4096}, v242
        s_lshl_b32 s14, s45, 6
        s_lshl_b32 s11, s16, 5
        s_add_u32 s11, s14, s11
        v_add_u32 v3, s11, v1
        v_lshl_add_u32 v3, v3, 1, s44      ; token
        v_mul_u32_u24 v3, 2560, v3
        v_and_b32 v4, 1, v2
        v_lshlrev_b32 v4, 5, v4
        v_and_b32 v5, 2, v2
        v_lshl_add_u32 v4, v5, 3, v4
        s_lshl_b32 s11, s46, 8
        s_lshl_b32 s15, s15, 6
        s_add_u32 s11, s11, s15
        s_add_u32 s11, s11, 1280
        v_add3_u32 v244, v3, v4, s11
        v_add_u32 v245, {32*2560}, v244
        s_mul_i32 s15, s14, {6097 if NH == 4 else 3067}
        s_lshr_b32 s15, s15, 19            ; /BLK
        s_add_u32 s14, s14, 63
        s_mul_i32 s14, s14, {6097 if NH == 4 else 3067}
        s_lshr_b32 s14, s14, 19
        v_mov_b32 v3, s15
        v_mov_b32 v4, s14
        v_cmp_gt_u32 vcc, {NG}, v0
        s_mul_i32 s14, s44, {NB}
        v_and_b32 v1, {NG-1}, v0
        v_cndmask_b32 v3, v4, v3, vcc
        v_add_u32 v3, s14, v3
        v_lshl_add_u32 v3, v3, {NG.bit_length()-1}, v1
        v_lshlrev_b32 v3, 7, v3
        v_add_u32 v246, {WS_FLAGB}, v3
        """)

    def wo_rows(self, n):
        c, h = n >> 1, n & 1
        hp, q = divmod(c, 5)
        if q < 2: return 40*hp + 8*q + 4*h
        if q < 4: return 40*hp + 20 + 8*(q-2) + 4*h
        return 40*hp + 16 + 20*h
    def b_loader(self):
        a = self.a
        a(f"""
        s_sub_u32 s10, s3, 4
        v_lshrrev_b32 v1, 3, v0            ; r
        v_and_b32 v2, 7, v0                ; c
        s_and_b32 s11, s10, 1
        s_lshl_b32 s11, s11, 2
        v_lshrrev_b32 v3, 1, v1
        v_add_u32 v3, s11, v3
        v_xor_b32 v2, v2, v3
        s_lshl_b32 s11, s10, 3
        s_add_u32 s11, s11, s9             ; i0 + 8*lw
        s_lshl_b32 s11, s11, 1
        s_add_u32 s11, s11, s6
        s_mul_i32 s11, s11, 1280
        v_mul_u32_u24 v1, 2560, v1
        v_lshl_add_u32 v1, v2, 4, v1
        v_add_u32 v10, s11, v1
        """)
        if NH == 4: a(f"""
        v_lshrrev_b32 v4, 5, v0
        v_and_b32 v5, 31, v0               ; pos
        s_and_b32 s11, s10, 1
        s_lshl_b32 s11, s11, 1
        v_or_b32 v6, s11, v4
        v_lshlrev_b32 v6, 1, v6            ; f(k), phase 0
        v_xor_b32 v5, v5, v6
        v_xor_b32 v6, 8, v5                ; phase 1
        v_min_u32 v5, 29, v5
        v_min_u32 v6, 29, v6
        v_mul_u32_u24 v7, 26, v5
        v_mul_u32_u24 v8, 26, v6
        v_lshrrev_b32 v7, 8, v7            ; seg
        v_lshrrev_b32 v8, 8, v8
        v_mul_u32_u24 v7, 1120, v7         ; seg*(1280-160)
        v_mul_u32_u24 v8, 1120, v8
        v_lshl_add_u32 v7, v5, 4, v7
        v_lshl_add_u32 v8, v6, 4, v8
        v_mul_u32_u24 v4, 3840, v4
        s_mul_i32 s11, s10, {2*3840}
        s_mul_i32 s12, s8, 160
        s_add_u32 s11, s11, s12
        v_add3_u32 v16, v7, v4, s11
        s_add_u32 s11, s11, 30720
        v_add3_u32 v17, v8, v4, s11
        s_lshl_b32 s13, s10, 10            ; lw*1024
        """)
        else: a(f"""
        v_lshrrev_b32 v4, 4, v0            ; kr
        v_and_b32 v5, 15, v0               ; pos
        s_and_b32 s11, s10, 2
        s_lshl_b32 s11, s11, 1
        v_or_b32 v6, s11, v4
        v_lshlrev_b32 v6, 1, v6            ; f(k)
        v_xor_b32 v5, v5, v6
        v_min_u32 v6, 14, v5
        v_mul_u32_u24 v7, 52, v6
        v_lshrrev_b32 v7, 8, v7            ; seg
        v_mul_u32_u24 v7, 1200, v7         ; seg*(1280-80)
        v_lshl_add_u32 v7, v6, 4, v7
        v_mul_u32_u24 v8, 3840, v4
        s_mul_i32 s11, s10, {4*3840}
        s_mul_i32 s12, s8, 80
        s_add_u32 s11, s11, s12
        v_add3_u32 v16, v7, v8, s11
        s_lshl_b32 s13, s10, 10            ; lw*1024
        """)
        for m in range(1, NX): a(f"v_add_u32 v{10+m}, {m*81920}, v10")
        if NH == 4:
            for m in range(2, 8): a(f"v_add_u32 v{16+m}, {(m//2)*61440}, v{16+(m&1)}")
        else:
            for m in range(1, 4): a(f"v_add_u32 v{16+m}, {m*61440}, v16")
        a(f"""
        s_lshl_b32 s11, s10, 3
        s_sub_u32 s11, {BLK + 8 - 32*(NX-1)}, s11
        v_lshrrev_b32 v1, 3, v0
        v_cmp_lt_i32 vcc, v1, s11
        v_bfrev_b32 v2, 1
        s_nop 0
        v_cndmask_b32 v{10+NX-1}, v2, v{10+NX-1}, vcc
        """.replace("v_cmp_lt_i32 vcc, v1, s11", "v_cmp_gt_i32 vcc, s11, v1"))
        def issue(st):
            base = (st % 3) * SLOT
            if self.rot is None: a(f"s_movk_i32 s14, {st*128}\ns_mov_b32 s15, {st*64*3840}")
            else: a(f"s_lshl_b32 s14, s61, 7\ns_mul_i32 s15, s61, {64*3840}\ns_add_u32 s61, s61, 1\ns_cmp_eq_u32 s61, 10\ns_cselect_b32 s61, 0, s61")
            if NH == 4: order = [("x",0),("w",0),("w",1),("w",2),("x",1),("w",3),("w",4),("w",5),("x",2),("w",6),("w",7)]
            else: order = [("x",0),("w",0),("x",1),("x",2),("w",1),("x",3),("w",2),("x",4),("x",5),("w",3)]
            for t, m in order:
                if t == "x":
                    a(f"s_add_u32 m0, s13, {base + m*4096}\ns_nop 0\nbuffer_load_dwordx4 v{10+m}, {srd(sX)}, s14 offen lds")
                else:
                    a(f"s_add_u32 m0, s13, {base + WOFF + m*4096}\ns_nop 0\nbuffer_load_dwordx4 v{16+m}, {srd(sW)}, s15 offen lds")
        if self.rot is not None:
            ma, mb, mask = self.rot
            a(f"s_and_b32 s61, s8, {mask}\ns_mul_i32 s61, s61, {ma}\ns_mul_i32 s11, s7, {mb}\ns_add_u32 s61, s61, s11\ns_mul_i32 s11, s61, 6554\ns_lshr_b32 s11, s11, 16\ns_mul_i32 s11, s11, 10\ns_sub_u32 s61, s61, s11")
        a("s_waitcnt lgkmcnt(0)")
        issue(0)
        issue(1)
        if self.prebar: a("s_barrier")
        def late_setup():
            self.rest_srds()
            self.b2_params()
            self.hoist()
            a(f"""
            v_lshrrev_b32 v4, 4, v0            ; kr
            v_and_b32 v5, 15, v0               ; pos
            v_lshlrev_b32 v6, 1, v4            ; f(k)
            v_xor_b32 v5, v5, v6
            v_mul_u32_u24 v26, 1280, v4
            v_lshl_add_u32 v26, v5, 4, v26
            s_lshl_b32 s11, s46, 8
            v_add_u32 v26, s11, v26
            v_xor_b32 v27, 128, v26
            v_mov_b32 v25, 252
            """)
        for s in range(10):
            a(f"s_waitcnt vmcnt({NX + NW_ if s < 9 else 0})")
            if self.diag:
                l = a.label("L_d")
                a(f"s_cmp_lg_u32 s3, 4\ns_cbranch_scc1 {l}"); self.stamp(1+s, True); a(f"{l}:")
            elif s == 0: self.stamp(1)
            a("s_barrier")
            if self.diag:
                l = a.label("L_d")
                a(f"s_cmp_lg_u32 s3, 5\ns_cbranch_scc1 {l}"); self.stamp(1+s, True); a(f"{l}:")
            if s == 8: a(f"s_mov_b32 s{sDBG+2}, 256\ns_mov_b32 s{sDBG+3}, 0x20000\nv_mov_b32 v25, 252\nbuffer_load_dword v24, v25, {srd(sDBG)}, 0 offen sc1")
            if s <= 7 and not (self.noload and s >= 1): issue(s + 2)
            if self.diag:
                l = a.label("L_d")
                a(f"s_cmp_lg_u32 s3, 6\ns_cbranch_scc1 {l}"); self.stamp(1+s, True); a(f"{l}:")
            if s == 8: late_setup()
        def wo_issue(lists):
            done = a.label("L_wo")
            a(f"s_cmp_ge_u32 s5, 20\ns_cbranch_scc1 {done}")
            ws = sorted(lists); labs = {w: a.label("L_wo") for w in ws}
            for w in ws[1:]: a(f"s_cmp_eq_u32 s3, {w}\ns_cbranch_scc1 {labs[w]}")
            for w in ws:
                a(f"{labs[w]}:")
                for n in lists[w]:
                    dst = XREG + n*1024 if n < 80 else (n-80)*1024
                    a(f"s_mov_b32 m0, {dst}\ns_mov_b32 s14, {self.wo_rows(n)*1280}\nbuffer_load_dwordx4 v{26 + ((n >> 1) & 1)}, {srd(sWO)}, s14 offen lds")
                if w != ws[-1]: a(f"s_branch {done}")
            a(f"{done}:")
        n1, n2 = self.wo1, self.wo2
        wo_issue({4+w: range(w*n1, (w+1)*n1) for w in range(4)})
        a("s_barrier")
        wo_issue({4+w: range(4*n1 + w*n2, 4*n1 + (w+1)*n2) for w in range(4)})
        a("s_barrier")
        a("s_cmp_lt_u32 s3, 6\ns_cbranch_scc1 L_attn")
        r0 = 4*(n1+n2); h = (80 - r0) // 2
        wo_issue({6: range(r0, r0+h), 7: range(r0+h, 80)})
        a("s_barrier")
        wo_issue({6: range(80, 120), 7: range(120, 160)})
        a("s_waitcnt vmcnt(0)\ns_branch L_pub")

    def b_compute(self):
        a = self.a
        a("L_Bcomp:")
        self.rest_srds()
        self.b2_params()
        ACC = 128; F0 = 32; F1 = 72
        AX = 16; AW = 20
        a(f"""
        v_and_b32 v1, 15, v0             ; row
        v_lshrrev_b32 v2, 4, v0          ; g
        v_lshrrev_b32 v3, 1, v1
        v_xor_b32 v3, v3, v2
        v_lshlrev_b32 v4, 7, v1
        v_lshl_add_u32 v{AX}, v3, 4, v4
        s_lshr_b32 s10, s3, 1
        s_mul_i32 s10, s10, {96 if NH == 2 else 0}
        s_lshl_b32 s12, s10, 7
        v_add_u32 v{AX}, s12, v{AX}
        v_xor_b32 v{AX+1}, 64, v{AX}
        v_add_u32 v{AX+2}, {2*SLOT}, v{AX}
        v_add_u32 v{AX+3}, {2*SLOT}, v{AX+1}
        v_bfe_u32 v5, v0, 2, 2           ; r
        v_and_b32 v6, 3, v0              ; c
        v_and_b32 v7, 1, v2
        v_lshl_or_b32 v7, v7, 2, v5      ; r | (g&1)<<2
        s_and_b32 s11, s3, {NH-1}
        s_lshl_b32 s12, s11, 2
        v_xor_b32 v7, s12, v7
        v_lshl_add_u32 v8, v2, 3, v5     ; 8g + r
        v_lshlrev_b32 v8, {WROW.bit_length()-1}, v8
        v_lshl_add_u32 v8, v6, 3, v8     ; + c*8
        v_add_u32 v8, {WOFF}, v8
        """)
        for t in range(4):
            a(f"v_xor_b32 v9, {t}, v7\nv_lshl_add_u32 v{AW+t}, v9, 5, v8\nv_add_u32 v{AW+4+t}, {2*SLOT}, v{AW+t}")
        a(f"""
        s_lshl_b32 s12, s11, 7
        s_mul_i32 s13, s10, {QS}
        s_add_u32 s12, s12, s13
        v_mul_u32_u24 v28, {QS}, v1
        v_lshl_add_u32 v28, v2, 3, v28
        v_add_u32 v28, s12, v28
        """)
        if XMAP == 0 or NH == 4:
            a(f"""
            s_mul_i32 s12, s5, 43
            v_min_u32 v29, 42, v0
            v_add_u32 v29, s12, v29
            v_lshl_add_u32 v29, v29, 1, s6
            v_mul_u32_u24 v29, 1280, v29
            s_mul_i32 s12, s5, 24
            v_min_u32 v10, 23, v0
            v_add_u32 v10, s12, v10
            v_mul_u32_u24 v11, 21846, v10
            v_lshrrev_b32 v11, 16, v11
            v_mul_u32_u24 v12, 3, v11
            v_sub_u32 v12, v10, v12
            v_mul_u32_u24 v11, 1280, v11
            v_lshl_add_u32 v11, v12, 7, v11
            s_lshr_b32 s12, s4, 1
            s_mul_i32 s12, s12, 320
            v_add_u32 v30, s12, v11
            """)
        else:
            a(f"""
            s_mul_i32 s12, s5, 22
            s_bfe_u32 s13, s4, 0x10001
            s_mul_i32 s13, s13, {3*BLK}
            s_add_u32 s12, s12, s13
            v_min_u32 v29, 21, v0
            v_add_u32 v29, s12, v29
            v_lshl_add_u32 v29, v29, 1, s6
            v_mul_u32_u24 v29, 1280, v29
            s_mul_i32 s12, s5, 40
            v_min_u32 v10, 39, v0
            v_add_u32 v10, s12, v10
            v_mul_u32_u24 v11, 13108, v10
            v_lshrrev_b32 v11, 16, v11
            v_mul_u32_u24 v12, 5, v11
            v_sub_u32 v12, v10, v12
            v_mul_u32_u24 v11, 1280, v11
            v_lshl_add_u32 v11, v12, 7, v11
            s_lshr_b32 s12, s4, 2
            s_mul_i32 s12, s12, 640
            v_add_u32 v30, s12, v11
            """)
        self.hoist()
        a("s_waitcnt lgkmcnt(0)")
        a(f"""
        s_cmp_lg_u32 s3, 3
        s_cbranch_scc1 L_nw3
        v_mul_u32_u24 v13, 0x289000, v0
        v_add_u32 v13, 0xf000, v13
        v_mul_u32_u24 v14, {820*2560}, v0
        v_add_u32 v14, 1280, v14
        s_getpc_b64 s[16:17]
        L_pc:
        s_sub_u32 s16, s16, L_pc - L_start
        s_subb_u32 s17, s17, 0
        s_and_b32 s18, s5, 7
        s_lshl_b32 s18, s18, 13
        v_lshl_add_u32 v15, v0, 7, s18
        v_min_u32 v15, L_end - L_start, v15
        s_cmp_lg_u32 s2, 0
        s_cbranch_scc1 L_noepoch
        v_mov_b32 v10, {WS_X}
        buffer_load_dword v11, v10, {srd(sWS)}, 0 offen sc1
        v_mov_b32 v12, 252
        s_waitcnt vmcnt(0)
        v_add_u32 v11, 1, v11
        v_or_b32 v11, 0x80000000, v11
        s_mov_b64 exec, 1
        buffer_store_dword v11, v12, {srd(sDBG)}, 0 offen sc1
        buffer_store_dword v11, v10, {srd(sWS)}, 0 offen sc1
        s_mov_b64 exec, -1
        L_noepoch:
        global_load_dword v255, v15, s[16:17]
        buffer_load_dword v255, v13, {srd(sWS)}, 0 offen
        buffer_load_dword v255, v14, {srd(sOUT)}, 0 offen
        buffer_load_dword v255, v0, {srd(sWO)}, 0 offen
        L_nw3:
        {"s_barrier" if self.prebar else ""}
        """)
        a("s_and_b32 s58, s3, 1\ns_lshr_b32 s59, s3, 1")
        def touch(st):
            if not self.warm or st > 9: return
            l1, l2 = a.label("L_t"), a.label("L_t")
            a(f"""
            s_cmp_lg_u32 s59, {st & 1}
            s_cbranch_scc1 {l2}
            s_cmp_lg_u32 s58, 0
            s_cbranch_scc1 {l1}
            s_movk_i32 s12, {st*128}
            buffer_load_dword v255, v29, {srd(sX)}, s12 offen
            s_branch {l2}
            {l1}:
            s_mov_b32 s12, {st*64*3840}
            buffer_load_dword v255, v30, {srd(sW)}, s12 offen
            {l2}:
            """)
        for st in range(2, self.look): touch(st)
        def reads(st, kk, F):
            sl = st % 3
            r = []
            ax = AX + kk + (2 if sl == 2 else 0); aw = AW + (4 if sl == 2 else 0); b = SLOT if sl == 1 else 0
            for t in range(4):
                for h in range(2):
                    r.append(f"ds_read_b64_tr_b16 v[{F+24+4*t+2*h}:{F+25+4*t+2*h}], v{aw+t} offset:{b + kk*32*WROW + h*4*WROW}")
            xs = [f"ds_read_b128 v[{F+4*rt}:{F+4*rt+3}], v{ax} offset:{b + rt*2048}" for rt in range(6)]
            return r[0:2] + xs + r[2:]
        def mfmas(F, first):
            m = []
            for t in range(4):
                for rt in range(6):
                    d = ACC + 4*(t*6 + rt)
                    c = "0" if first else f"v[{d}:{d+3}]"
                    m.append(f"v_mfma_f32_16x16x32_bf16 v[{d}:{d+3}], v[{F+24+4*t}:{F+27+4*t}], v[{F+4*rt}:{F+4*rt+3}], {c}")
            return m
        a("s_barrier")
        self.stamp(1)
        for r in reads(0, 0, F0): a(r)
        def stage_out(k):
            t, rt = divmod(k, 6)
            d = ACC + 4*k; tmp = 32 + 2*(k % 8)
            a(f"v_cvt_pk_bf16_f32 v{tmp}, v{d}, v{d+1}\nv_cvt_pk_bf16_f32 v{tmp+1}, v{d+2}, v{d+3}")
            a(f"ds_write_b64 v28, v[{tmp}:{tmp+1}] offset:{rt*16*QS + t*32}")
        for ks in range(20):
            st, kk = divmod(ks, 2)
            F, Fn = (F0, F1) if kk == 0 else (F1, F0)
            a("s_waitcnt lgkmcnt(0)")
            if kk == 1: a("s_barrier")
            rd = reads(st, 1, Fn) if kk == 0 else (reads(st+1, 0, Fn) if st < 9 else [])
            for i, m in enumerate(mfmas(F, ks == 0)):
                if not self.nomfma or ks in (0, 19): a(m)
                if i < len(rd) and (not self.noread or ks >= 18): a(rd[i])
                if kk == 0 and i == 16: touch(st + self.look)
                if ks == 19 and i >= 3: stage_out(i - 3)
            if ks == 9: self.stamp(2)
        self.stamp(3)
        a("s_nop 1")
        for k in range(21, 24): stage_out(k)
        a("s_waitcnt lgkmcnt(0)\ns_barrier")
        self.stamp(4)

    def attention(self):
        a = self.a
        Q, K, V, S, O = 32, 42, 72, 104, 32
        a("L_attn:")
        for c in range(5):
            a(f"ds_read_b64 v[{Q+2*c}:{Q+2*c+1}], v224 offset:{8*QS + 8*c}")
            for d in range(3):
                a(f"ds_read_b64 v[{K+10*d+2*c}:{K+10*d+2*c+1}], v224 offset:{4*d*QS + 40*NH + 8*c}")
        for d in range(3):
            for c in range(5):
                a(f"ds_read_b64_tr_b16 v[{V+10*d+2*c}:{V+10*d+2*c+1}], v225 offset:{4*d*QS + 80*NH + 8*c}")
        a("s_waitcnt lgkmcnt(15)")
        for c in range(5):
            for d in range(3):
                cc = "0" if c == 0 else f"v[{S+4*d}:{S+4*d+3}]"
                a(f"v_mfma_f32_4x4x4_16b_bf16 v[{S+4*d}:{S+4*d+3}], v[{K+10*d+2*c}:{K+10*d+2*c+1}], v[{Q+2*c}:{Q+2*c+1}], {cc}")
        a("s_waitcnt lgkmcnt(0)\ns_barrier")
        self.stamp(5)
        a(f"""
        s_nop 2
        v_mov_b32 v{S}, v{S+8}
        v_cndmask_b32 v{S+1}, v{S+1}, v{S+9}, s[48:49]
        v_cndmask_b32 v{S+2}, v{S+2}, v{S+10}, s[50:51]
        v_cndmask_b32 v{S+3}, v{S+3}, v{S+11}, s[52:53]
        s_cmp_lg_u32 s7, 0
        s_cbranch_scc1 L_nomask
        s_cmp_ge_u32 s3, {NH//2}
        s_cbranch_scc1 L_nomask
        v_mov_b32 v17, 0xff800000
        """)
        for i in range(4):
            a(f"v_add_u32 v18, {4-i}, v232\nv_cmp_gt_u32 vcc, v18, v228\ns_nop 1\nv_cndmask_b32 v{S+4+i}, v{S+4+i}, v17, vcc")
            a(f"v_subrev_u32 v18, {i}, v232\nv_and_b32 v18, 7, v18\nv_cmp_gt_u32 vcc, v18, v228\ns_nop 1\nv_cndmask_b32 v{S+i}, v{S+i}, v17, vcc")
        import math, struct
        cbits = struct.unpack("<I", struct.pack("<f", 20 ** -0.5 * math.log2(math.e)))[0]
        a(f"""
        L_nomask:
        s_mov_b32 s15, {cbits:#x}
        v_max3_f32 v17, v{S}, v{S+1}, v{S+2}
        v_max3_f32 v18, v{S+3}, v{S+4}, v{S+5}
        v_max3_f32 v17, v17, v{S+6}, v{S+7}
        v_max_f32 v17, v17, v18
        v_mul_f32 v17, s15, v17
        """)
        for i in range(8): a(f"v_fma_f32 v{S+i}, v{S+i}, s15, -v17")
        for i in range(8): a(f"v_exp_f32 v{S+i}, v{S+i}")
        a(f"""
        v_add_f32 v17, v{S}, v{S+1}
        v_add_f32 v18, v{S+2}, v{S+3}
        v_add_f32 v19, v{S+4}, v{S+5}
        v_add_f32 v20, v{S+6}, v{S+7}
        v_add_f32 v17, v17, v18
        v_add_f32 v19, v19, v20
        v_add_f32 v17, v17, v19
        v_rcp_f32 v17, v17
        s_nop 0
        """)
        for i in range(8): a(f"v_mul_f32 v{S+i}, v{S+i}, v17")
        P0, P1, P2 = 18, 20, 22
        a(f"""
        v_cvt_pk_bf16_f32 v26, v{S}, v{S+1}
        v_cvt_pk_bf16_f32 v27, v{S+2}, v{S+3}
        v_cvt_pk_bf16_f32 v{P1}, v{S+4}, v{S+5}
        v_cvt_pk_bf16_f32 v{P1+1}, v{S+6}, v{S+7}
        v_and_b32 v{P2}, v26, v226
        v_and_b32 v{P2+1}, v27, v227
        v_xor_b32 v{P0}, v26, v{P2}
        v_xor_b32 v{P0+1}, v27, v{P2+1}
        s_nop 0
        """)
        for n, (d, P) in enumerate(((1, P1), (2, P2), (0, P0))):
            for c in range(5):
                cc = "0" if n == 0 else f"v[{O+4*c}:{O+4*c+3}]"
                a(f"v_mfma_f32_4x4x4_16b_bf16 v[{O+4*c}:{O+4*c+3}], v[{V+10*d+2*c}:{V+10*d+2*c+1}], v[{P}:{P+1}], {cc}")
        a("s_nop 1")
        for c in range(5):
            a(f"v_cvt_pk_bf16_f32 v{56+2*c}, v{O+4*c}, v{O+4*c+1}\nv_cvt_pk_bf16_f32 v{57+2*c}, v{O+4*c+2}, v{O+4*c+3}")
            if c == 1: a(f"buffer_store_dwordx4 v[56:59], v229, {srd(sWS)}, 0 offen sc1")
            if c == 3: a(f"buffer_store_dwordx4 v[60:63], v230, {srd(sWS)}, 0 offen sc1")
        a(f"buffer_store_dwordx2 v[64:65], v231, {srd(sWS)}, 0 offen sc1")
        self.stamp(6)
        a("s_waitcnt vmcnt(0)")

    def b2(self):
        a = self.a
        WF = 64
        a("L_pub:")
        self.stamp(7)
        a("s_barrier")
        a(f"""
        s_cmp_lg_u32 s3, 7
        s_cbranch_scc1 L_noflag
        v_readfirstlane_b32 s56, v24
        s_mov_b32 s57, 0
        L_ep:
        s_cmp_lg_u32 s56, 0
        s_cbranch_scc1 L_gotep
        buffer_load_dword v24, v25, {srd(sDBG)}, 0 offen sc1
        s_add_u32 s57, s57, 1
        s_waitcnt vmcnt(0)
        v_readfirstlane_b32 s56, v24
        s_cmp_lt_u32 s57, {SPIN}
        s_cbranch_scc1 L_ep
        L_gotep:
        s_mul_i32 s12, s6, {NB}
        s_add_u32 s12, s12, s7
        s_lshl_b32 s12, s12, {NG.bit_length()-1}
        s_add_u32 s12, s12, s8
        s_lshl_b32 s12, s12, 7
        s_add_u32 s12, s12, {WS_FLAGB}
        v_mov_b32 v1, s12
        v_mov_b32 v2, s56
        s_mov_b64 exec, 1
        buffer_store_dword v2, v1, {srd(sWS)}, 0 offen sc1
        s_mov_b64 exec, -1
        L_noflag:
        s_cmp_ge_u32 s5, 20
        s_cbranch_scc1 L_fin
        """)
        def wread(ks):
            r = ks % 10
            if ks < 10: b = (235, 236) if r < 8 else (237, 238)
            else: b = (233, 234) if r < 8 else (239, 240)
            for ct in range(2):
                for h in range(2):
                    d = WF + 8*ks + 4*ct + 2*h
                    a(f"ds_read_b64_tr_b16 v[{d}:{d+1}], v{b[ct]} offset:{(r % 8)*8192 + h*1024}")
        for ks in range(20): wread(ks)
        a(f"""
        s_cmp_lg_u32 s3, 7
        s_cbranch_scc1 L_nopoll
        L_poll:
        buffer_load_dword v29, v246, {srd(sWS)}, 0 offen sc1
        s_add_u32 s57, s57, 1
        s_cmp_ge_u32 s57, {SPIN}
        s_cbranch_scc1 L_nopoll
        s_waitcnt vmcnt(0)
        v_cmp_ne_u32 vcc, s56, v29
        s_cbranch_vccnz L_poll
        L_nopoll:
        s_waitcnt vmcnt(0) lgkmcnt(0)
        """)
        self.stamp(8)
        a("s_barrier")
        for n in range(10):
            a(f"s_add_u32 m0, s60, {n*8192}\ns_mov_b32 s14, {n*8*32768}\nbuffer_load_dwordx4 v241, {srd(sWS)}, s14 offen sc1 lds")
        ACC = 32; OF = 48
        def oread(ks):
            F = OF + 8*(ks & 1)
            b, o = (242, ks*4096) if ks < 12 else (243, (ks-12)*4096)
            return [f"ds_read_b128 v[{F+4*tt}:{F+4*tt+3}], v{b} offset:{o + tt*256}" for tt in range(2)]
        bounds = {0: 9, 2: 7, 6: 4, 12: 0}
        a(f"s_waitcnt vmcnt(9)")
        self.stamp(9)
        a("s_barrier")
        for r in oread(0): a(r)
        for ks in range(20):
            F = OF + 8*(ks & 1)
            a("s_waitcnt lgkmcnt(0)")
            if ks + 1 in bounds: a(f"s_waitcnt vmcnt({bounds[ks+1]})\ns_barrier")
            rd = oread(ks+1) if ks < 19 else []
            i = 0
            for tt in range(2):
                for ct in range(2):
                    d = ACC + 8*tt + 4*ct
                    c = "0" if ks == 0 else f"v[{d}:{d+3}]"
                    w = WF + 8*ks + 4*ct
                    if i < len(rd): a(rd[i])
                    a(f"v_mfma_f32_16x16x32_bf16 v[{d}:{d+3}], v[{w}:{w+3}], v[{F+4*tt}:{F+4*tt+3}], {c}")
                    i += 1
        self.stamp(10)
        a("s_nop 5")
        for tt in range(2):
            d = ACC + 8*tt; o = 4 + 4*tt
            a(f"""
            v_cvt_pk_bf16_f32 v{o}, v{d}, v{d+1}
            v_cvt_pk_bf16_f32 v{o+1}, v{d+2}, v{d+3}
            v_cvt_pk_bf16_f32 v{o+2}, v{d+4}, v{d+5}
            v_cvt_pk_bf16_f32 v{o+3}, v{d+6}, v{d+7}
            s_nop 1
            v_permlane16_swap_b32 v{o}, v{o+2}
            v_permlane16_swap_b32 v{o+1}, v{o+3}
            buffer_store_dwordx4 v[{o}:{o+3}], v{244+tt}, {srd(sOUT)}, 0 offen {self.outflag}
            """)
        if self.stamps: a("s_waitcnt vmcnt(0)")
        self.stamp(11)
        a("L_fin:")
        self.stamp_out(12)
        a("s_endpgm")

    apre = None
    def a_prefetch(self):
        a = self.a
        a(f"""
        s_cmp_lt_u32 s3, 4
        s_cbranch_scc1 L_apre_done
        s_sub_u32 s10, s5, 24
        s_lshl_b32 s10, s10, 1
        s_and_b32 s11, s3, 1
        s_add_u32 s10, s10, s11            ; 0..15
        s_cmp_ge_u32 s3, 6
        s_cbranch_scc1 L_apre_w
        s_mul_i32 s12, s10, 33
        s_bfe_u32 s13, s4, 0x10001
        s_mul_i32 s13, s13, {NB//2*BLK}
        s_add_u32 s12, s12, s13
        s_sub_u32 s12, s12, 8
        v_min_u32 v1, 32, v0
        v_add_u32 v1, s12, v1
        s_and_b32 s12, s4, 1
        v_lshl_add_u32 v1, v1, 1, s12
        v_mul_i32_i24 v1, 1280, v1
        s_waitcnt lgkmcnt(0)
        """)
        for st in range(self.apre, 10): a(f"buffer_load_dword v255, v1, {srd(sX)}, 0 offen offset:{st*128}")
        a(f"""
        s_branch L_apre_done
        L_apre_w:
        s_mul_i32 s12, s10, 60
        v_min_u32 v1, 59, v0
        v_add_u32 v1, s12, v1
        v_mul_u32_u24 v2, 13108, v1
        v_lshrrev_b32 v2, 16, v2
        v_mul_u32_u24 v3, 5, v2
        v_sub_u32 v3, v1, v3
        v_mul_u32_u24 v2, 1280, v2
        v_lshl_add_u32 v2, v3, 7, v2
        s_lshr_b32 s12, s4, 2
        s_mul_i32 s12, s12, 640
        v_add_u32 v1, s12, v2
        s_waitcnt lgkmcnt(0)
        """)
        for st in range(self.apre, 10): a(f"s_mov_b32 s12, {st*64*3840}\nbuffer_load_dword v255, v1, {srd(sW)}, s12 offen")
        a("L_apre_done:")
    outflag = ""
    prebar = True
    warm = True
    look = 4
    rot = None
    diag = False
    noload = False
    nomfma = False
    noread = False
    wo1 = 4
    wo2 = 7
    def build(self):
        self.prologue()
        self.b_loader()
        self.b_compute()
        self.attention()
        self.b2()
        self.a("L_A:")
        if self.apre is not None and not self.doA: self.a_prefetch()
        if self.doA:
            from gen_a import gen_a
            gen_a(self)
        self.a("L_end:\ns_endpgm")
        return single_file(self.a.text(), 256, 512, LDS_BYTES, vgpr=256, accum=256, header=open('header.txt').read())

def main():
    import argparse
    ap = argparse.ArgumentParser()
    ap.add_argument("-o", default="k.s"); ap.add_argument("--stamps", action="store_true"); ap.add_argument("--noA", action="store_true")
    ap.add_argument("--outflag", default="")
    ap.add_argument("--set", action="append", default=[])
    x = ap.parse_args()
    g = G(stamps=x.stamps, doA=not x.noA); g.outflag = x.outflag
    for kv in x.set:
        k, v = kv.split("="); setattr(g, k, eval(v))
    open(x.o, "w").write(g.build())
if __name__ == "__main__":
    import gen
    gen.main()
```

```python
import sys
from asmlib import *

WS_X     = 0x0
WS_FLAGB = 0x1000
WS_FLAGA = 0x8000
WS_V     = 0xC000
WS_STAMP = 0x500000
WS_O     = 0x10000
WS_U     = 0x2A0000
WS_SIZE  = 0x600000
O_BYTES  = 80 * 32768

import os
NH = int(os.environ.get("NH", "2"))
XMAP = int(os.environ.get("XMAP", "0"))
if NH == 4:
    SLOT, WOFF, QS, BLK = 45056, 12288, 520, 86
else:
    SLOT, WOFF, QS, BLK = 40960, 24576, 264, 171
NX, NW_ = (3, 8) if NH == 4 else (6, 4)
WROW = 512 if NH == 4 else 256
NG = 32 // NH
NB = 192 // (2 * NG)
XREG = 81920
LDS_BYTES = 163840
SPIN = 0x40000

sX, sW, sWO, sOUT, sWS, sDBG = 20, 24, 28, 32, 36, 40
def srd(n): return f"s[{n}:{n+3}]"

class G:
    def __init__(self, stamps=False, doA=True):
        self.a = Asm(); self.stamps = stamps; self.doA = doA
    def stamp(self, idx, force=False):
        if self.stamps and (force or not self.diag or idx == 0): self.a(f"s_memtime s[{64+2*idx}:{65+2*idx}]")
    def stamp_out(self, n):
        if not self.stamps: return
        a = self.a
        if self.dbgst:
            l = a.label("L_dbg")
            a(f"""
            s_memrealtime s[94:95]
            s_waitcnt lgkmcnt(0)
            s_mov_b64 exec, 1
            v_mov_b32 v1, 0
            v_mov_b32 v2, s94
            s_not_b32 s5, s96
            v_mov_b32 v3, s5
            buffer_atomic_umax v2, v1, {srd(sDBG)}, 0 offen sc1
            buffer_atomic_umax v3, v1, {srd(sDBG)}, 0 offen offset:4 sc1
            s_cmp_lg_u32 s2, {self.dbgst}
            s_cbranch_scc1 {l}
            s_cmp_lg_u32 s3, 0
            s_cbranch_scc1 {l}
            """)
            for k in range(1, n):
                a(f"s_sub_u32 s5, s{64+2*k}, s64\nv_mov_b32 v4, s5\nbuffer_store_dword v4, v1, {srd(sDBG)}, 0 offen offset:{4+4*k} sc1\ns_nop 1")
            a(f"s_sub_u32 s5, s94, s96\nv_mov_b32 v4, s5\nbuffer_store_dword v4, v1, {srd(sDBG)}, 0 offen offset:60 sc1")
            a(f"{l}:")
            return
        a("s_memrealtime s[94:95]\ns_waitcnt lgkmcnt(0)")
        a("s_lshl_b32 s4, s2, 3\ns_add_u32 s4, s4, s3\ns_lshl_b32 s4, s4, 6")
        a(f"s_add_u32 s4, s4, {WS_STAMP}\nv_mov_b32 v1, s4\ns_mov_b64 exec, 1")
        for j in range(0, 16, 4):
            for i in range(4):
                k = j + i
                if k == 0: a(f"v_mov_b32 v{4+i}, s96")
                elif k == 15: a(f"v_mov_b32 v{4+i}, s94")
                elif k < n: a(f"s_sub_u32 s5, s{64+2*k}, s64\nv_mov_b32 v{4+i}, s5")
                else: a(f"v_mov_b32 v{4+i}, 0")
            a(f"buffer_store_dwordx4 v[4:7], v1, {srd(sWS)}, 0 offen offset:{j*4}\ns_nop 1")

    def prologue(self):
        a = self.a
        a(f"""
        L_start:
        s_cmp_ge_u32 s2, 256
        s_cbranch_scc1 L_end
        s_load_dwordx2 s[{sX}:{sX+1}], s[0:1], 40
        s_load_dwordx2 s[{sW}:{sW+1}], s[0:1], 48
        s_load_dwordx2 s[{sWO}:{sWO+1}], s[0:1], 56
        s_load_dwordx2 s[{sOUT}:{sOUT+1}], s[0:1], 64
        s_load_dwordx2 s[{sDBG}:{sDBG+1}], s[0:1], 72
        s_load_dwordx2 s[{sWS}:{sWS+1}], s[0:1], 80
        """)
        if self.stamps: a("s_memrealtime s[96:97]")
        self.stamp(0)
        a(f"""
        v_lshrrev_b32 v1, 6, v0
        v_and_b32 v0, 63, v0
        v_readfirstlane_b32 s3, v1
        s_mov_b32 s{sX+2}, {2048*1280}
        s_mov_b32 s{sX+3}, 0x20000
        s_mov_b32 s{sW+2}, {640*3840}
        s_mov_b32 s{sW+3}, 0x20000
        s_and_b32 s4, s2, 7
        s_lshr_b32 s5, s2, 3             ; slot
        s_cmp_ge_u32 s5, 24
        s_cbranch_scc1 L_A
        s_and_b32 s6, s4, 1              ; parity
        """)
        if NH == 4: a("""
        s_lshr_b32 s7, s5, 1             ; blk 0..11
        s_and_b32 s8, s4, 6
        s_and_b32 s9, s5, 1
        s_add_u32 s8, s8, s9
        """)
        elif XMAP == 0: a("""
        s_lshr_b32 s7, s5, 2             ; blk 0..5
        s_and_b32 s8, s4, 6
        s_lshl_b32 s8, s8, 1
        s_and_b32 s9, s5, 3
        s_add_u32 s8, s8, s9
        """)
        else: a("""
        s_lshr_b32 s7, s5, 3
        s_bfe_u32 s9, s4, 0x10001
        s_mul_i32 s9, s9, 3
        s_add_u32 s7, s7, s9             ; blk 0..5
        s_and_b32 s8, s4, 4
        s_lshl_b32 s8, s8, 1
        s_and_b32 s9, s5, 7
        s_add_u32 s8, s8, s9
        """)
        a(f"""
        s_mul_i32 s9, s7, {BLK}
        s_sub_u32 s9, s9, 8
        s_cmp_lt_u32 s3, 4
        s_cbranch_scc1 L_Bcomp
        """)
    def rest_srds(self):
        self.a(f"""
        s_mov_b32 s{sWO+2}, {640*1280}
        s_mov_b32 s{sWO+3}, 0x20000
        s_mov_b32 s{sOUT+2}, {2048*2560}
        s_mov_b32 s{sOUT+3}, 0x20000
        s_mov_b32 s{sWS+2}, {WS_SIZE}
        s_mov_b32 s{sWS+3}, 0x20000
        s_mov_b32 s{sDBG+2}, 256
        s_mov_b32 s{sDBG+3}, 0x20000
        """)
    def b2_params(self):
        self.a(f"""
        s_mul_i32 s44, s5, 52
        s_lshr_b32 s44, s44, 8           ; slot/5
        s_mul_i32 s46, s44, 5
        s_sub_u32 s46, s5, s46           ; cb
        s_lshl_b32 s45, s4, 2
        s_add_u32 s45, s45, s44
        s_and_b32 s44, s45, 1
        s_lshr_b32 s45, s45, 1
        """)


    def hoist(self):
        self.a(f"""
        v_and_b32 v1, 31, v0               ; tok
        v_lshrrev_b32 v2, 5, v0            ; hh
        s_lshr_b32 s12, s3, {NH//4}
        s_lshl_b32 s12, s12, 5
        s_and_b32 s16, s3, {NH//4}
        v_add_u32 v3, s12, v1              ; r-8
        v_mul_u32_u24 v4, {QS}, v3
        v_mul_u32_u24 v5, 40, v2
        s_mul_i32 s11, s16, 80
        v_add_u32 v5, s11, v5
        v_add_u32 v224, v4, v5
        v_and_b32 v232, 3, v0              ; j
        v_bfe_u32 v7, v0, 2, 2
        v_lshl_add_u32 v7, v232, 2, v7
        v_and_b32 v8, 16, v0
        v_add3_u32 v7, v7, v8, s12
        v_mul_u32_u24 v7, {QS}, v7
        v_add_u32 v225, v7, v5
        v_cmp_le_u32 s[48:49], 1, v232     ; i<=j for i=1
        v_cmp_le_u32 s[50:51], 2, v232
        v_cmp_le_u32 s[52:53], 3, v232
        v_mov_b32 v9, 0xffff
        v_cndmask_b32 v226, v9, -1, s[48:49]
        v_cndmask_b32 v227, 0, v9, s[50:51]
        v_cndmask_b32 v227, v227, -1, s[52:53]    ; keys 2,3
        v_add_u32 v228, s9, v3
        v_add_u32 v228, 8, v228
        s_lshl_b32 s11, s8, {NH//4}
        s_add_u32 s11, s11, s16
        s_mul_i32 s11, s11, {5*32768}
        s_lshl_b32 s14, s6, 14
        s_add_u32 s11, s11, s14
        s_add_u32 s11, s11, {WS_O}
        v_lshlrev_b32 v6, 4, v228
        v_add_u32 v6, s11, v6
        v_lshl_add_u32 v7, v2, 3, v6
        v_add_u32 v7, {4*32768}, v7
        v_lshl_add_u32 v6, v2, 16, v6
        s_sub_u32 s14, 1016, s9
        s_min_u32 s14, s14, {BLK}
        v_cmp_gt_u32 vcc, s14, v3
        v_bfrev_b32 v8, 1
        s_and_b32 s15, s3, 3               ; cp
        v_cndmask_b32 v229, v8, v6, vcc
        v_cndmask_b32 v231, v8, v7, vcc
        v_add_u32 v230, 32768, v229
        s_lshr_b32 s16, s3, 2              ; tr
        v_lshrrev_b32 v2, 4, v0            ; g
        v_bfe_u32 v5, v0, 2, 2             ; r
        v_and_b32 v7, 1, v2
        v_lshl_or_b32 v7, v7, 2, v5
        s_lshl_b32 s12, s15, 1
        v_xor_b32 v7, s12, v7
        v_lshl_add_u32 v8, v2, 3, v5
        v_lshlrev_b32 v8, 8, v8
        v_lshl_add_u32 v8, v232, 3, v8
        v_lshl_add_u32 v233, v7, 5, v8
        v_xor_b32 v234, 32, v233           ; ct1
        v_add_u32 v235, {XREG}, v233
        v_add_u32 v236, {XREG}, v234
        v_add_u32 v237, {XREG+8*8192}, v233
        v_add_u32 v238, {XREG+8*8192}, v234
        v_add_u32 v239, {8*8192}, v233
        v_add_u32 v240, {8*8192}, v234
        s_lshl_b32 s12, s44, 14
        s_lshl_b32 s11, s45, 10
        s_add_u32 s12, s12, s11
        s_lshl_b32 s11, s3, 15
        s_add_u32 s12, s12, s11
        s_add_u32 s12, s12, {WS_O}
        v_lshl_add_u32 v241, v0, 4, s12
        s_lshl_b32 s60, s3, 10
        s_add_u32 s60, s60, {XREG}
        v_and_b32 v1, 15, v0
        v_lshlrev_b32 v3, 10, v2
        v_lshl_add_u32 v3, v1, 4, v3
        s_lshl_b32 s14, s16, 9
        s_add_u32 s14, s14, {XREG}
        v_add_u32 v242, s14, v3
        v_add_u32 v243, {12*4096}, v242
        s_lshl_b32 s14, s45, 6
        s_lshl_b32 s11, s16, 5
        s_add_u32 s11, s14, s11
        v_add_u32 v3, s11, v1
        v_lshl_add_u32 v3, v3, 1, s44      ; token
        v_mul_u32_u24 v3, 2560, v3
        v_and_b32 v4, 1, v2
        v_lshlrev_b32 v4, 5, v4
        v_and_b32 v5, 2, v2
        v_lshl_add_u32 v4, v5, 3, v4
        s_lshl_b32 s11, s46, 8
        s_lshl_b32 s15, s15, 6
        s_add_u32 s11, s11, s15
        s_add_u32 s11, s11, 1280
        v_add3_u32 v244, v3, v4, s11
        v_add_u32 v245, {32*2560}, v244
        s_mul_i32 s15, s14, {6097 if NH == 4 else 3067}
        s_lshr_b32 s15, s15, 19            ; /BLK
        s_add_u32 s14, s14, 63
        s_mul_i32 s14, s14, {6097 if NH == 4 else 3067}
        s_lshr_b32 s14, s14, 19
        v_mov_b32 v3, s15
        v_mov_b32 v4, s14
        v_cmp_gt_u32 vcc, {NG}, v0
        s_mul_i32 s14, s44, {NB}
        v_and_b32 v1, {NG-1}, v0
        v_cndmask_b32 v3, v4, v3, vcc
        v_add_u32 v3, s14, v3
        v_lshl_add_u32 v3, v3, {NG.bit_length()-1}, v1
        v_lshlrev_b32 v3, 7, v3
        v_add_u32 v246, {WS_FLAGB}, v3
        """)

    def wo_rows(self, n):
        c, h = n >> 1, n & 1
        hp, q = divmod(c, 5)
        if q < 2: return 40*hp + 8*q + 4*h
        if q < 4: return 40*hp + 20 + 8*(q-2) + 4*h
        return 40*hp + 16 + 20*h
    def b_loader(self):
        a = self.a
        a(f"""
        s_sub_u32 s10, s3, 4
        v_lshrrev_b32 v1, 3, v0            ; r
        v_and_b32 v2, 7, v0                ; c
        s_and_b32 s11, s10, 1
        s_lshl_b32 s11, s11, 2
        v_lshrrev_b32 v3, 1, v1
        v_add_u32 v3, s11, v3
        v_xor_b32 v2, v2, v3
        s_lshl_b32 s11, s10, 3
        s_add_u32 s11, s11, s9             ; i0 + 8*lw
        s_lshl_b32 s11, s11, 1
        s_add_u32 s11, s11, s6
        s_mul_i32 s11, s11, 1280
        v_mul_u32_u24 v1, 2560, v1
        v_lshl_add_u32 v1, v2, 4, v1
        v_add_u32 v10, s11, v1
        """)
        if NH == 4: a(f"""
        v_lshrrev_b32 v4, 5, v0
        v_and_b32 v5, 31, v0               ; pos
        s_and_b32 s11, s10, 1
        s_lshl_b32 s11, s11, 1
        v_or_b32 v6, s11, v4
        v_lshlrev_b32 v6, 1, v6            ; f(k), phase 0
        v_xor_b32 v5, v5, v6
        v_xor_b32 v6, 8, v5                ; phase 1
        v_min_u32 v5, 29, v5
        v_min_u32 v6, 29, v6
        v_mul_u32_u24 v7, 26, v5
        v_mul_u32_u24 v8, 26, v6
        v_lshrrev_b32 v7, 8, v7            ; seg
        v_lshrrev_b32 v8, 8, v8
        v_mul_u32_u24 v7, 1120, v7         ; seg*(1280-160)
        v_mul_u32_u24 v8, 1120, v8
        v_lshl_add_u32 v7, v5, 4, v7
        v_lshl_add_u32 v8, v6, 4, v8
        v_mul_u32_u24 v4, 3840, v4
        s_mul_i32 s11, s10, {2*3840}
        s_mul_i32 s12, s8, 160
        s_add_u32 s11, s11, s12
        v_add3_u32 v16, v7, v4, s11
        s_add_u32 s11, s11, 30720
        v_add3_u32 v17, v8, v4, s11
        s_lshl_b32 s13, s10, 10            ; lw*1024
        """)
        else: a(f"""
        v_lshrrev_b32 v4, 4, v0            ; kr
        v_and_b32 v5, 15, v0               ; pos
        s_and_b32 s11, s10, 2
        s_lshl_b32 s11, s11, 1
        v_or_b32 v6, s11, v4
        v_lshlrev_b32 v6, 1, v6            ; f(k)
        v_xor_b32 v5, v5, v6
        v_min_u32 v6, 14, v5
        v_mul_u32_u24 v7, 52, v6
        v_lshrrev_b32 v7, 8, v7            ; seg
        v_mul_u32_u24 v7, 1200, v7         ; seg*(1280-80)
        v_lshl_add_u32 v7, v6, 4, v7
        v_mul_u32_u24 v8, 3840, v4
        s_mul_i32 s11, s10, {4*3840}
        s_mul_i32 s12, s8, 80
        s_add_u32 s11, s11, s12
        v_add3_u32 v16, v7, v8, s11
        s_lshl_b32 s13, s10, 10            ; lw*1024
        """)
        for m in range(1, NX): a(f"v_add_u32 v{10+m}, {m*81920}, v10")
        if NH == 4:
            for m in range(2, 8): a(f"v_add_u32 v{16+m}, {(m//2)*61440}, v{16+(m&1)}")
        else:
            for m in range(1, 4): a(f"v_add_u32 v{16+m}, {m*61440}, v16")
        a(f"""
        s_lshl_b32 s11, s10, 3
        s_sub_u32 s11, {BLK + 8 - 32*(NX-1)}, s11
        v_lshrrev_b32 v1, 3, v0
        v_cmp_lt_i32 vcc, v1, s11
        v_bfrev_b32 v2, 1
        s_nop 0
        v_cndmask_b32 v{10+NX-1}, v2, v{10+NX-1}, vcc
        """.replace("v_cmp_lt_i32 vcc, v1, s11", "v_cmp_gt_i32 vcc, s11, v1"))
        def issue(st):
            base = (st % 3) * SLOT
            if self.rot is None: a(f"s_movk_i32 s14, {st*128}\ns_mov_b32 s15, {st*64*3840}")
            else: a(f"s_lshl_b32 s14, s61, 7\ns_mul_i32 s15, s61, {64*3840}\ns_add_u32 s61, s61, 1\ns_cmp_eq_u32 s61, 10\ns_cselect_b32 s61, 0, s61")
            if NH == 4: order = [("x",0),("w",0),("w",1),("w",2),("x",1),("w",3),("w",4),("w",5),("x",2),("w",6),("w",7)]
            else: order = [("x",0),("w",0),("x",1),("x",2),("w",1),("x",3),("w",2),("x",4),("x",5),("w",3)]
            for t, m in order:
                if t == "x":
                    a(f"s_add_u32 m0, s13, {base + m*4096}\ns_nop 0\nbuffer_load_dwordx4 v{10+m}, {srd(sX)}, s14 offen lds")
                else:
                    a(f"s_add_u32 m0, s13, {base + WOFF + m*4096}\ns_nop 0\nbuffer_load_dwordx4 v{16+m}, {srd(sW)}, s15 offen lds")
        if self.rot is not None:
            ma, mb, mask = self.rot
            a(f"s_and_b32 s61, s8, {mask}\ns_mul_i32 s61, s61, {ma}\ns_mul_i32 s11, s7, {mb}\ns_add_u32 s61, s61, s11\ns_mul_i32 s11, s61, 6554\ns_lshr_b32 s11, s11, 16\ns_mul_i32 s11, s11, 10\ns_sub_u32 s61, s61, s11")
        a("s_waitcnt lgkmcnt(0)")
        issue(0)
        issue(1)
        if self.prebar: a("s_barrier")
        def late_setup():
            self.rest_srds()
            self.b2_params()
            self.hoist()
            a(f"""
            v_lshrrev_b32 v4, 4, v0            ; kr
            v_and_b32 v5, 15, v0               ; pos
            v_lshlrev_b32 v6, 1, v4            ; f(k)
            v_xor_b32 v5, v5, v6
            v_mul_u32_u24 v26, 1280, v4
            v_lshl_add_u32 v26, v5, 4, v26
            s_lshl_b32 s11, s46, 8
            v_add_u32 v26, s11, v26
            v_xor_b32 v27, 128, v26
            v_mov_b32 v25, 252
            """)
        for s in range(10):
            a(f"s_waitcnt vmcnt({NX + NW_ if s < 9 else 0})")
            if self.diag:
                l = a.label("L_d")
                a(f"s_cmp_lg_u32 s3, 4\ns_cbranch_scc1 {l}"); self.stamp(1+s, True); a(f"{l}:")
            elif s == 0: self.stamp(1)
            a("s_barrier")
            if self.diag:
                l = a.label("L_d")
                a(f"s_cmp_lg_u32 s3, 5\ns_cbranch_scc1 {l}"); self.stamp(1+s, True); a(f"{l}:")
            if s == 8: a(f"s_mov_b32 s{sDBG+2}, 256\ns_mov_b32 s{sDBG+3}, 0x20000\nv_mov_b32 v25, 252\nbuffer_load_dword v24, v25, {srd(sDBG)}, 0 offen sc1")
            if s <= 7 and not (self.noload and s >= 1): issue(s + 2)
            if self.diag:
                l = a.label("L_d")
                a(f"s_cmp_lg_u32 s3, 6\ns_cbranch_scc1 {l}"); self.stamp(1+s, True); a(f"{l}:")
            if s == 8: late_setup()
        def wo_issue(lists):
            done = a.label("L_wo")
            a(f"s_cmp_ge_u32 s5, 20\ns_cbranch_scc1 {done}")
            ws = sorted(lists); labs = {w: a.label("L_wo") for w in ws}
            for w in ws[1:]: a(f"s_cmp_eq_u32 s3, {w}\ns_cbranch_scc1 {labs[w]}")
            for w in ws:
                a(f"{labs[w]}:")
                for n in lists[w]:
                    dst = XREG + n*1024 if n < 80 else (n-80)*1024
                    a(f"s_mov_b32 m0, {dst}\ns_mov_b32 s14, {self.wo_rows(n)*1280}\nbuffer_load_dwordx4 v{26 + ((n >> 1) & 1)}, {srd(sWO)}, s14 offen lds")
                if w != ws[-1]: a(f"s_branch {done}")
            a(f"{done}:")
        n1, n2 = self.wo1, self.wo2
        wo_issue({4+w: range(w*n1, (w+1)*n1) for w in range(4)})
        a("s_barrier")
        wo_issue({4+w: range(4*n1 + w*n2, 4*n1 + (w+1)*n2) for w in range(4)})
        a("s_barrier")
        a("s_cmp_lt_u32 s3, 6\ns_cbranch_scc1 L_attn")
        r0 = 4*(n1+n2); h = (80 - r0) // 2
        wo_issue({6: range(r0, r0+h), 7: range(r0+h, 80)})
        a("s_barrier")
        wo_issue({6: range(80, 120), 7: range(120, 160)})
        a("s_waitcnt vmcnt(0)\ns_branch L_pub")

    def b_compute(self):
        a = self.a
        a("L_Bcomp:")
        self.rest_srds()
        self.b2_params()
        ACC = 128; F0 = 32; F1 = 72
        AX = 16; AW = 20
        a(f"""
        v_and_b32 v1, 15, v0             ; row
        v_lshrrev_b32 v2, 4, v0          ; g
        v_lshrrev_b32 v3, 1, v1
        v_xor_b32 v3, v3, v2
        v_lshlrev_b32 v4, 7, v1
        v_lshl_add_u32 v{AX}, v3, 4, v4
        s_lshr_b32 s10, s3, 1
        s_mul_i32 s10, s10, {96 if NH == 2 else 0}
        s_lshl_b32 s12, s10, 7
        v_add_u32 v{AX}, s12, v{AX}
        v_xor_b32 v{AX+1}, 64, v{AX}
        v_add_u32 v{AX+2}, {2*SLOT}, v{AX}
        v_add_u32 v{AX+3}, {2*SLOT}, v{AX+1}
        v_bfe_u32 v5, v0, 2, 2           ; r
        v_and_b32 v6, 3, v0              ; c
        v_and_b32 v7, 1, v2
        v_lshl_or_b32 v7, v7, 2, v5      ; r | (g&1)<<2
        s_and_b32 s11, s3, {NH-1}
        s_lshl_b32 s12, s11, 2
        v_xor_b32 v7, s12, v7
        v_lshl_add_u32 v8, v2, 3, v5     ; 8g + r
        v_lshlrev_b32 v8, {WROW.bit_length()-1}, v8
        v_lshl_add_u32 v8, v6, 3, v8     ; + c*8
        v_add_u32 v8, {WOFF}, v8
        """)
        for t in range(4):
            a(f"v_xor_b32 v9, {t}, v7\nv_lshl_add_u32 v{AW+t}, v9, 5, v8\nv_add_u32 v{AW+4+t}, {2*SLOT}, v{AW+t}")
        a(f"""
        s_lshl_b32 s12, s11, 7
        s_mul_i32 s13, s10, {QS}
        s_add_u32 s12, s12, s13
        v_mul_u32_u24 v28, {QS}, v1
        v_lshl_add_u32 v28, v2, 3, v28
        v_add_u32 v28, s12, v28
        """)
        if XMAP == 0 or NH == 4:
            a(f"""
            s_mul_i32 s12, s5, 43
            v_min_u32 v29, 42, v0
            v_add_u32 v29, s12, v29
            v_lshl_add_u32 v29, v29, 1, s6
            v_mul_u32_u24 v29, 1280, v29
            s_mul_i32 s12, s5, 24
            v_min_u32 v10, 23, v0
            v_add_u32 v10, s12, v10
            v_mul_u32_u24 v11, 21846, v10
            v_lshrrev_b32 v11, 16, v11
            v_mul_u32_u24 v12, 3, v11
            v_sub_u32 v12, v10, v12
            v_mul_u32_u24 v11, 1280, v11
            v_lshl_add_u32 v11, v12, 7, v11
            s_lshr_b32 s12, s4, 1
            s_mul_i32 s12, s12, 320
            v_add_u32 v30, s12, v11
            """)
        else:
            a(f"""
            s_mul_i32 s12, s5, 22
            s_bfe_u32 s13, s4, 0x10001
            s_mul_i32 s13, s13, {3*BLK}
            s_add_u32 s12, s12, s13
            v_min_u32 v29, 21, v0
            v_add_u32 v29, s12, v29
            v_lshl_add_u32 v29, v29, 1, s6
            v_mul_u32_u24 v29, 1280, v29
            s_mul_i32 s12, s5, 40
            v_min_u32 v10, 39, v0
            v_add_u32 v10, s12, v10
            v_mul_u32_u24 v11, 13108, v10
            v_lshrrev_b32 v11, 16, v11
            v_mul_u32_u24 v12, 5, v11
            v_sub_u32 v12, v10, v12
            v_mul_u32_u24 v11, 1280, v11
            v_lshl_add_u32 v11, v12, 7, v11
            s_lshr_b32 s12, s4, 2
            s_mul_i32 s12, s12, 640
            v_add_u32 v30, s12, v11
            """)
        self.hoist()
        a("s_waitcnt lgkmcnt(0)")
        a(f"""
        s_cmp_lg_u32 s3, 3
        s_cbranch_scc1 L_nw3
        v_mul_u32_u24 v13, 0x289000, v0
        v_add_u32 v13, 0xf000, v13
        v_mul_u32_u24 v14, {820*2560}, v0
        v_add_u32 v14, 1280, v14
        s_getpc_b64 s[16:17]
        L_pc:
        s_sub_u32 s16, s16, L_pc - L_start
        s_subb_u32 s17, s17, 0
        s_and_b32 s18, s5, 7
        s_lshl_b32 s18, s18, 13
        v_lshl_add_u32 v15, v0, 7, s18
        v_min_u32 v15, L_end - L_start, v15
        s_cmp_lg_u32 s2, 0
        s_cbranch_scc1 L_noepoch
        v_mov_b32 v10, {WS_X}
        buffer_load_dword v11, v10, {srd(sWS)}, 0 offen sc1
        v_mov_b32 v12, 252
        s_waitcnt vmcnt(0)
        v_add_u32 v11, 1, v11
        v_or_b32 v11, 0x80000000, v11
        s_mov_b64 exec, 1
        buffer_store_dword v11, v12, {srd(sDBG)}, 0 offen sc1
        buffer_store_dword v11, v10, {srd(sWS)}, 0 offen sc1
        s_mov_b64 exec, -1
        L_noepoch:
        global_load_dword v255, v15, s[16:17]
        buffer_load_dword v255, v13, {srd(sWS)}, 0 offen
        buffer_load_dword v255, v14, {srd(sOUT)}, 0 offen
        buffer_load_dword v255, v0, {srd(sWO)}, 0 offen
        L_nw3:
        {"s_barrier" if self.prebar else ""}
        """)
        a("s_and_b32 s58, s3, 1\ns_lshr_b32 s59, s3, 1")
        def touch(st):
            if not self.warm or st > 9: return
            l1, l2 = a.label("L_t"), a.label("L_t")
            a(f"""
            s_cmp_lg_u32 s59, {st & 1}
            s_cbranch_scc1 {l2}
            s_cmp_lg_u32 s58, 0
            s_cbranch_scc1 {l1}
            s_movk_i32 s12, {st*128}
            buffer_load_dword v255, v29, {srd(sX)}, s12 offen
            s_branch {l2}
            {l1}:
            s_mov_b32 s12, {st*64*3840}
            buffer_load_dword v255, v30, {srd(sW)}, s12 offen
            {l2}:
            """)
        for st in range(2, self.look): touch(st)
        def reads(st, kk, F):
            sl = st % 3
            r = []
            ax = AX + kk + (2 if sl == 2 else 0); aw = AW + (4 if sl == 2 else 0); b = SLOT if sl == 1 else 0
            for t in range(4):
                for h in range(2):
                    r.append(f"ds_read_b64_tr_b16 v[{F+24+4*t+2*h}:{F+25+4*t+2*h}], v{aw+t} offset:{b + kk*32*WROW + h*4*WROW}")
            xs = [f"ds_read_b128 v[{F+4*rt}:{F+4*rt+3}], v{ax} offset:{b + rt*2048}" for rt in range(6)]
            return r[0:2] + xs + r[2:]
        def mfmas(F, first):
            m = []
            for t in range(4):
                for rt in range(6):
                    d = ACC + 4*(t*6 + rt)
                    c = "0" if first else f"v[{d}:{d+3}]"
                    m.append(f"v_mfma_f32_16x16x32_bf16 v[{d}:{d+3}], v[{F+24+4*t}:{F+27+4*t}], v[{F+4*rt}:{F+4*rt+3}], {c}")
            return m
        a("s_barrier")
        self.stamp(1)
        for r in reads(0, 0, F0): a(r)
        def stage_out(k):
            t, rt = divmod(k, 6)
            d = ACC + 4*k; tmp = 32 + 2*(k % 8)
            a(f"v_cvt_pk_bf16_f32 v{tmp}, v{d}, v{d+1}\nv_cvt_pk_bf16_f32 v{tmp+1}, v{d+2}, v{d+3}")
            a(f"ds_write_b64 v28, v[{tmp}:{tmp+1}] offset:{rt*16*QS + t*32}")
        for ks in range(20):
            st, kk = divmod(ks, 2)
            F, Fn = (F0, F1) if kk == 0 else (F1, F0)
            a("s_waitcnt lgkmcnt(0)")
            if kk == 1: a("s_barrier")
            rd = reads(st, 1, Fn) if kk == 0 else (reads(st+1, 0, Fn) if st < 9 else [])
            for i, m in enumerate(mfmas(F, ks == 0)):
                if not self.nomfma or ks in (0, 19): a(m)
                if i < len(rd) and (not self.noread or ks >= 18): a(rd[i])
                if kk == 0 and i == 16: touch(st + self.look)
                if ks == 19 and i >= 3: stage_out(i - 3)
            if ks == 9: self.stamp(2)
        self.stamp(3)
        a("s_nop 1")
        for k in range(21, 24): stage_out(k)
        a("s_waitcnt lgkmcnt(0)\ns_barrier")
        self.stamp(4)

    def attention(self):
        a = self.a
        Q, K, V, S, O = 32, 42, 72, 104, 32
        a("L_attn:")
        for c in range(5):
            a(f"ds_read_b64 v[{Q+2*c}:{Q+2*c+1}], v224 offset:{8*QS + 8*c}")
            for d in range(3):
                a(f"ds_read_b64 v[{K+10*d+2*c}:{K+10*d+2*c+1}], v224 offset:{4*d*QS + 40*NH + 8*c}")
        for d in range(3):
            for c in range(5):
                a(f"ds_read_b64_tr_b16 v[{V+10*d+2*c}:{V+10*d+2*c+1}], v225 offset:{4*d*QS + 80*NH + 8*c}")
        a("s_waitcnt lgkmcnt(15)")
        for c in range(5):
            for d in range(3):
                cc = "0" if c == 0 else f"v[{S+4*d}:{S+4*d+3}]"
                a(f"v_mfma_f32_4x4x4_16b_bf16 v[{S+4*d}:{S+4*d+3}], v[{K+10*d+2*c}:{K+10*d+2*c+1}], v[{Q+2*c}:{Q+2*c+1}], {cc}")
        a("s_waitcnt lgkmcnt(0)\ns_barrier")
        self.stamp(5)
        a(f"""
        s_nop 2
        v_mov_b32 v{S}, v{S+8}
        v_cndmask_b32 v{S+1}, v{S+1}, v{S+9}, s[48:49]
        v_cndmask_b32 v{S+2}, v{S+2}, v{S+10}, s[50:51]
        v_cndmask_b32 v{S+3}, v{S+3}, v{S+11}, s[52:53]
        s_cmp_lg_u32 s7, 0
        s_cbranch_scc1 L_nomask
        s_cmp_ge_u32 s3, {NH//2}
        s_cbranch_scc1 L_nomask
        v_mov_b32 v17, 0xff800000
        """)
        for i in range(4):
            a(f"v_add_u32 v18, {4-i}, v232\nv_cmp_gt_u32 vcc, v18, v228\ns_nop 1\nv_cndmask_b32 v{S+4+i}, v{S+4+i}, v17, vcc")
            a(f"v_subrev_u32 v18, {i}, v232\nv_and_b32 v18, 7, v18\nv_cmp_gt_u32 vcc, v18, v228\ns_nop 1\nv_cndmask_b32 v{S+i}, v{S+i}, v17, vcc")
        import math, struct
        cbits = struct.unpack("<I", struct.pack("<f", 20 ** -0.5 * math.log2(math.e)))[0]
        a(f"""
        L_nomask:
        s_mov_b32 s15, {cbits:#x}
        v_max3_f32 v17, v{S}, v{S+1}, v{S+2}
        v_max3_f32 v18, v{S+3}, v{S+4}, v{S+5}
        v_max3_f32 v17, v17, v{S+6}, v{S+7}
        v_max_f32 v17, v17, v18
        v_mul_f32 v17, s15, v17
        """)
        for i in range(8): a(f"v_fma_f32 v{S+i}, v{S+i}, s15, -v17")
        for i in range(8): a(f"v_exp_f32 v{S+i}, v{S+i}")
        a(f"""
        v_add_f32 v17, v{S}, v{S+1}
        v_add_f32 v18, v{S+2}, v{S+3}
        v_add_f32 v19, v{S+4}, v{S+5}
        v_add_f32 v20, v{S+6}, v{S+7}
        v_add_f32 v17, v17, v18
        v_add_f32 v19, v19, v20
        v_add_f32 v17, v17, v19
        v_rcp_f32 v17, v17
        s_nop 0
        """)
        for i in range(8): a(f"v_mul_f32 v{S+i}, v{S+i}, v17")
        P0, P1, P2 = 18, 20, 22
        a(f"""
        v_cvt_pk_bf16_f32 v26, v{S}, v{S+1}
        v_cvt_pk_bf16_f32 v27, v{S+2}, v{S+3}
        v_cvt_pk_bf16_f32 v{P1}, v{S+4}, v{S+5}
        v_cvt_pk_bf16_f32 v{P1+1}, v{S+6}, v{S+7}
        v_and_b32 v{P2}, v26, v226
        v_and_b32 v{P2+1}, v27, v227
        v_xor_b32 v{P0}, v26, v{P2}
        v_xor_b32 v{P0+1}, v27, v{P2+1}
        s_nop 0
        """)
        for n, (d, P) in enumerate(((1, P1), (2, P2), (0, P0))):
            for c in range(5):
                cc = "0" if n == 0 else f"v[{O+4*c}:{O+4*c+3}]"
                a(f"v_mfma_f32_4x4x4_16b_bf16 v[{O+4*c}:{O+4*c+3}], v[{V+10*d+2*c}:{V+10*d+2*c+1}], v[{P}:{P+1}], {cc}")
        a("s_nop 1")
        for c in range(5):
            a(f"v_cvt_pk_bf16_f32 v{56+2*c}, v{O+4*c}, v{O+4*c+1}\nv_cvt_pk_bf16_f32 v{57+2*c}, v{O+4*c+2}, v{O+4*c+3}")
            if c == 1: a(f"buffer_store_dwordx4 v[56:59], v229, {srd(sWS)}, 0 offen sc1")
            if c == 3: a(f"buffer_store_dwordx4 v[60:63], v230, {srd(sWS)}, 0 offen sc1")
        a(f"buffer_store_dwordx2 v[64:65], v231, {srd(sWS)}, 0 offen sc1")
        self.stamp(6)
        a("s_waitcnt vmcnt(0)")

    def b2(self):
        a = self.a
        WF = 64
        a("L_pub:")
        self.stamp(7)
        a("s_barrier")
        a(f"""
        s_cmp_lg_u32 s3, 7
        s_cbranch_scc1 L_noflag
        v_readfirstlane_b32 s56, v24
        s_mov_b32 s57, 0
        L_ep:
        s_cmp_lg_u32 s56, 0
        s_cbranch_scc1 L_gotep
        buffer_load_dword v24, v25, {srd(sDBG)}, 0 offen sc1
        s_add_u32 s57, s57, 1
        s_waitcnt vmcnt(0)
        v_readfirstlane_b32 s56, v24
        s_cmp_lt_u32 s57, {SPIN}
        s_cbranch_scc1 L_ep
        L_gotep:
        s_mul_i32 s12, s6, {NB}
        s_add_u32 s12, s12, s7
        s_lshl_b32 s12, s12, {NG.bit_length()-1}
        s_add_u32 s12, s12, s8
        s_lshl_b32 s12, s12, 7
        s_add_u32 s12, s12, {WS_FLAGB}
        v_mov_b32 v1, s12
        v_mov_b32 v2, s56
        s_mov_b64 exec, 1
        buffer_store_dword v2, v1, {srd(sWS)}, 0 offen sc1
        s_mov_b64 exec, -1
        L_noflag:
        s_cmp_ge_u32 s5, 20
        s_cbranch_scc1 L_fin
        """)
        def wread(ks):
            r = ks % 10
            if ks < 10: b = (235, 236) if r < 8 else (237, 238)
            else: b = (233, 234) if r < 8 else (239, 240)
            for ct in range(2):
                for h in range(2):
                    d = WF + 8*ks + 4*ct + 2*h
                    a(f"ds_read_b64_tr_b16 v[{d}:{d+1}], v{b[ct]} offset:{(r % 8)*8192 + h*1024}")
        for ks in range(20): wread(ks)
        a(f"""
        s_cmp_lg_u32 s3, 7
        s_cbranch_scc1 L_nopoll
        L_poll:
        buffer_load_dword v29, v246, {srd(sWS)}, 0 offen sc1
        s_add_u32 s57, s57, 1
        s_cmp_ge_u32 s57, {SPIN}
        s_cbranch_scc1 L_nopoll
        s_waitcnt vmcnt(0)
        v_cmp_ne_u32 vcc, s56, v29
        s_cbranch_vccnz L_poll
        L_nopoll:
        s_waitcnt vmcnt(0) lgkmcnt(0)
        """)
        self.stamp(8)
        a("s_barrier")
        for n in range(10):
            a(f"s_add_u32 m0, s60, {n*8192}\ns_mov_b32 s14, {n*8*32768}\nbuffer_load_dwordx4 v241, {srd(sWS)}, s14 offen sc1 lds")
        ACC = 32; OF = 48
        def oread(ks):
            F = OF + 8*(ks & 1)
            b, o = (242, ks*4096) if ks < 12 else (243, (ks-12)*4096)
            return [f"ds_read_b128 v[{F+4*tt}:{F+4*tt+3}], v{b} offset:{o + tt*256}" for tt in range(2)]
        bounds = {0: 9, 2: 7, 6: 4, 12: 0}
        a(f"s_waitcnt vmcnt(9)")
        self.stamp(9)
        a("s_barrier")
        for r in oread(0): a(r)
        for ks in range(20):
            F = OF + 8*(ks & 1)
            a("s_waitcnt lgkmcnt(0)")
            if ks + 1 in bounds: a(f"s_waitcnt vmcnt({bounds[ks+1]})\ns_barrier")
            rd = oread(ks+1) if ks < 19 else []
            i = 0
            for tt in range(2):
                for ct in range(2):
                    d = ACC + 8*tt + 4*ct
                    c = "0" if ks == 0 else f"v[{d}:{d+3}]"
                    w = WF + 8*ks + 4*ct
                    if i < len(rd): a(rd[i])
                    a(f"v_mfma_f32_16x16x32_bf16 v[{d}:{d+3}], v[{w}:{w+3}], v[{F+4*tt}:{F+4*tt+3}], {c}")
                    i += 1
        self.stamp(10)
        a("s_nop 5")
        for tt in range(2):
            d = ACC + 8*tt; o = 4 + 4*tt
            a(f"""
            v_cvt_pk_bf16_f32 v{o}, v{d}, v{d+1}
            v_cvt_pk_bf16_f32 v{o+1}, v{d+2}, v{d+3}
            v_cvt_pk_bf16_f32 v{o+2}, v{d+4}, v{d+5}
            v_cvt_pk_bf16_f32 v{o+3}, v{d+6}, v{d+7}
            s_nop 1
            v_permlane16_swap_b32 v{o}, v{o+2}
            v_permlane16_swap_b32 v{o+1}, v{o+3}
            buffer_store_dwordx4 v[{o}:{o+3}], v{244+tt}, {srd(sOUT)}, 0 offen {self.outflag}
            """)
        if self.stamps: a("s_waitcnt vmcnt(0)")
        self.stamp(11)
        if self.delay:
            a(f"s_memtime s[64:65]\ns_waitcnt lgkmcnt(0)\nL_dly:\ns_memtime s[66:67]\ns_waitcnt lgkmcnt(0)\ns_sub_u32 s66, s66, s64\ns_cmp_lt_u32 s66, {self.delay}\ns_cbranch_scc1 L_dly")
        a("L_fin:")
        self.stamp_out(12)
        a("s_endpgm")

    apre = None
    def a_prefetch(self):
        a = self.a
        a(f"""
        s_cmp_lt_u32 s3, 4
        s_cbranch_scc1 L_apre_done
        s_sub_u32 s10, s5, 24
        s_lshl_b32 s10, s10, 1
        s_and_b32 s11, s3, 1
        s_add_u32 s10, s10, s11            ; 0..15
        s_cmp_ge_u32 s3, 6
        s_cbranch_scc1 L_apre_w
        s_mul_i32 s12, s10, 33
        s_bfe_u32 s13, s4, 0x10001
        s_mul_i32 s13, s13, {NB//2*BLK}
        s_add_u32 s12, s12, s13
        s_sub_u32 s12, s12, 8
        v_min_u32 v1, 32, v0
        v_add_u32 v1, s12, v1
        s_and_b32 s12, s4, 1
        v_lshl_add_u32 v1, v1, 1, s12
        v_mul_i32_i24 v1, 1280, v1
        s_waitcnt lgkmcnt(0)
        """)
        for st in range(self.apre, 10): a(f"buffer_load_dword v255, v1, {srd(sX)}, 0 offen offset:{st*128}")
        a(f"""
        s_branch L_apre_done
        L_apre_w:
        s_mul_i32 s12, s10, 60
        v_min_u32 v1, 59, v0
        v_add_u32 v1, s12, v1
        v_mul_u32_u24 v2, 13108, v1
        v_lshrrev_b32 v2, 16, v2
        v_mul_u32_u24 v3, 5, v2
        v_sub_u32 v3, v1, v3
        v_mul_u32_u24 v2, 1280, v2
        v_lshl_add_u32 v2, v3, 7, v2
        s_lshr_b32 s12, s4, 2
        s_mul_i32 s12, s12, 640
        v_add_u32 v1, s12, v2
        s_waitcnt lgkmcnt(0)
        """)
        for st in range(self.apre, 10): a(f"s_mov_b32 s12, {st*64*3840}\nbuffer_load_dword v255, v1, {srd(sW)}, s12 offen")
        a("L_apre_done:")
    outflag = ""
    prebar = True
    warm = True
    look = 4
    delay = 0
    dbgst = 0
    rot = None
    diag = False
    noload = False
    nomfma = False
    noread = False
    wo1 = 4
    wo2 = 7
    def build(self):
        self.prologue()
        self.b_loader()
        self.b_compute()
        self.attention()
        self.b2()
        self.a("L_A:")
        if self.apre is not None and not self.doA: self.a_prefetch()
        if self.doA:
            from gen_a import gen_a
            gen_a(self)
        self.a("L_end:\ns_endpgm")
        return single_file(self.a.text(), 256, 512, LDS_BYTES, vgpr=256, accum=256, header=open('header.txt').read())

def main():
    import argparse
    ap = argparse.ArgumentParser()
    ap.add_argument("-o", default="k.s"); ap.add_argument("--stamps", action="store_true"); ap.add_argument("--noA", action="store_true")
    ap.add_argument("--outflag", default="")
    ap.add_argument("--set", action="append", default=[])
    x = ap.parse_args()
    g = G(stamps=x.stamps, doA=not x.noA); g.outflag = x.outflag
    for kv in x.set:
        k, v = kv.split("="); setattr(g, k, eval(v))
    open(x.o, "w").write(g.build())
if __name__ == "__main__":
    import gen
    gen.main()
```
